```python
import torch

def _softmax(x, axis=-1):
    return torch.softmax(x, dim=axis)
def _gelu(x):
    return torch.nn.functional.gelu(x, approximate="tanh")
def _silu(x):
    return torch.nn.functional.silu(x)
def _sigmoid(x):
    return torch.sigmoid(x)
def _layernorm(x, axis=-1, eps=1e-5):
    m = x.mean(dim=axis, keepdim=True)
    v = x.var(dim=axis, keepdim=True, unbiased=False)
    return (x - m) / torch.sqrt(v + eps)
def _scatter_add(tgt, idx, src, axis=0):
    return tgt.clone().index_add_(axis, idx, src)
def _segment_sum(src, seg, n):
    out = torch.zeros((n,) + src.shape[1:], dtype=src.dtype)
    return out.index_add_(0, seg, src)
def _pad(x, pw):
    flat = tuple(v for pair in reversed(pw) for v in pair)
    return torch.nn.functional.pad(x, flat)

kernel_name = 'sequential_preLN__ssm_conv_s4__moe_arch_mod__prompt'

def setup_inputs():

    _w = (lambda a: (lambda t: t.to(torch.bfloat16) if t.is_floating_point() else t)(torch.as_tensor(a)))
    def _A_setup():
        B, L, D, N = 1, 2048, 448, 256
        A_re = -(lambda _x: torch.exp(torch.as_tensor(_x)))((lambda *s: torch.randn(*s, dtype=torch.bfloat16) * 6.4)(D, N))
        A_im = torch.pi * (lambda *s: torch.randn(*s, dtype=torch.bfloat16) * 0.05)(D, N)
        B_re = (lambda *s: torch.randn(*s, dtype=torch.bfloat16) * 0.05)(D, N)
        B_im = (lambda *s: torch.randn(*s, dtype=torch.bfloat16) * 0.05)(D, N)
        C_re = (lambda *s: torch.randn(*s, dtype=torch.bfloat16) * 0.05)(D, N)
        C_im = (lambda *s: torch.randn(*s, dtype=torch.bfloat16) * 0.05)(D, N)
        log_dt = (lambda *s: torch.randn(*s, dtype=torch.bfloat16) * 0.05)(D) * 0.5 - 4.0
        Dskip = (lambda *s: torch.randn(*s, dtype=torch.bfloat16) * 0.05)(D)
        return {
            "u": _w((lambda *s: torch.randn(*s, dtype=torch.bfloat16) * 0.05)(B, L, D)),
            "A_re": _w(A_re),
            "A_im": _w(A_im),
            "B_re": _w(B_re),
            "B_im": _w(B_im),
            "C_re": _w(C_re),
            "C_im": _w(C_im),
            "log_dt": _w(log_dt),
            "Dskip": _w(Dskip),
        }
    _A_in = _A_setup()

    def _B_setup():
        B, S, D, F, C = 1, 2048, 448, 1792, 1
        return {
            "x": _w((lambda *s: torch.randn(*s, dtype=torch.bfloat16) * 0.05)(B, S, D)),
            "w_r": _w((lambda *s: torch.randn(*s, dtype=torch.bfloat16) * 0.05)(D)),
            "w_gate": _w((lambda *s: torch.randn(*s, dtype=torch.bfloat16) * 0.05)(D, F)),
            "w_up": _w((lambda *s: torch.randn(*s, dtype=torch.bfloat16) * 0.05)(D, F)),
            "w_down": _w((lambda *s: torch.randn(*s, dtype=torch.bfloat16) * 0.05)(F, D)),
        }
    _B_in = _B_setup()

    return {
        "A_u": _A_in["u"],
        "A_A_re": _A_in["A_re"],
        "A_A_im": _A_in["A_im"],
        "A_B_re": _A_in["B_re"],
        "A_B_im": _A_in["B_im"],
        "A_C_re": _A_in["C_re"],
        "A_C_im": _A_in["C_im"],
        "A_log_dt": _A_in["log_dt"],
        "A_Dskip": _A_in["Dskip"],
        "B_x": _B_in["x"],
        "B_w_r": _B_in["w_r"],
        "B_w_gate": _B_in["w_gate"],
        "B_w_up": _B_in["w_up"],
        "B_w_down": _B_in["w_down"],
    }

def reference(A_u, A_A_re, A_A_im, A_B_re, A_B_im, A_C_re, A_C_im, A_log_dt, A_Dskip, B_x, B_w_r, B_w_gate, B_w_up, B_w_down):
    def _A_ref(u, A_re, A_im, B_re, B_im, C_re, C_im, log_dt, Dskip):
        Bsz, L, D = u.shape
        dt = torch.exp(log_dt)[:, None]
        A = A_re + 1j * A_im
        Bc = B_re + 1j * B_im
        Cc = C_re + 1j * C_im
        logdA = dt * A
        dB = dt * Bc
        l = (lambda x, dt: x.to(dt))(torch.arange(L), A_re.dtype)
        P = torch.exp(logdA[:, :, None] * l[None, None, :])
        K = torch.einsum("dn,dnl,dn->dl", Cc, P, dB).real
        L2 = 2 * L
        Kp = _pad(K, ((0, 0), (0, L)))
        up = (lambda x, *d: x.permute(*d))(u, 0, 2, 1)
        up = _pad(up, ((0, 0), (0, 0), (0, L)))
        Kf = (lambda x, axes=(-2,-1): torch.fft.rfft2(x.float(), dim=axes))(Kp[:, None, :], axes=(-2, -1))
        Uf = (lambda x, axes=(-2,-1): torch.fft.rfft2(x.float(), dim=axes))(up[:, :, None, :], axes=(-2, -1))
        Yf = Uf * Kf[None, :, :, :]
        y = (lambda x, s, axes=(-2,-1): torch.fft.irfft2(x, s=s, dim=axes).to(torch.bfloat16))(Yf, (1, L2), axes=(-2, -1))[:, :, 0, :L]
        y = (lambda x, *d: x.permute(*d))(y, 0, 2, 1) + u * Dskip[None, None, :]
        return y

    def _B_ref(x, w_r, w_gate, w_up, w_down):
        B, S, D = x.shape
        C = 1
        r = x @ w_r
        idx = torch.argsort(-r, axis=-1)[:, :C]
        idx_e = (lambda x, n, axis: torch.repeat_interleave(x, n, dim=axis))(idx.reshape(B, C, 1), D, axis=2)
        x_sel = (lambda x, i, axis: torch.take_along_dim(x, i, dim=axis))(x, idx_e, axis=1)
        g = _silu(x_sel @ w_gate)
        u = x_sel @ w_up
        y = (g * u) @ w_down
        r_sel = _sigmoid((lambda x, i, axis: torch.take_along_dim(x, i, dim=axis))(r, idx, axis=1))
        y = y * r_sel.reshape(B, C, 1)
        b_off = (torch.arange(B) * S).reshape(B, 1)
        flat_idx = (idx + b_off).reshape(B * C)
        zero = (x * 0.0).reshape(B * S, D)
        upd = _scatter_add(zero, flat_idx, y.reshape(B * C, D), axis=0)
        return x + upd.reshape(B, S, D)

    x = A_u
    h = x + _A_ref(_layernorm(x, axis=-1), A_A_re, A_A_im, A_B_re, A_B_im, A_C_re, A_C_im, A_log_dt, A_Dskip)
    h2 = h + _B_ref(_layernorm(h, axis=-1), B_w_r, B_w_gate, B_w_up, B_w_down)
    return h2
```

```python
from mb import *
on_gpu = os.path.exists('/dev/kfd')
pats = {
 "lin16": "v_lshlrev_b32 v1, 4, v6",
 "lin16+8": "v_lshlrev_b32 v1, 4, v6\n v_add_u32 v1, 8, v1",
 "lin16+4": "v_lshlrev_b32 v1, 4, v6\n v_add_u32 v1, 4, v1",
 "lin16+2": "v_lshlrev_b32 v1, 4, v6\n v_add_u32 v1, 2, v1",
 "toep2": "v_and_b32 v1, 15, v6\n v_lshlrev_b32 v1, 1, v1\n v_lshrrev_b32 v2, 4, v6\n v_lshlrev_b32 v2, 6, v2\n v_add_u32 v1, v1, v2",
 "toep4": "v_and_b32 v1, 14, v6\n v_lshlrev_b32 v1, 1, v1\n v_lshrrev_b32 v2, 4, v6\n v_lshlrev_b32 v2, 6, v2\n v_add_u32 v1, v1, v2",
 "toep8": "v_and_b32 v1, 12, v6\n v_lshlrev_b32 v1, 1, v1\n v_lshrrev_b32 v2, 4, v6\n v_lshlrev_b32 v2, 6, v2\n v_add_u32 v1, v1, v2",
 "toep16": "v_and_b32 v1, 8, v6\n v_lshlrev_b32 v1, 1, v1\n v_lshrrev_b32 v2, 4, v6\n v_lshlrev_b32 v2, 6, v2\n v_add_u32 v1, v1, v2",
 "lin8": "v_lshlrev_b32 v1, 3, v6",
 "lin8+4": "v_lshlrev_b32 v1, 3, v6\n v_add_u32 v1, 4, v1",
 "lin8+2": "v_lshlrev_b32 v1, 3, v6\n v_add_u32 v1, 2, v1",
 "lin4": "v_lshlrev_b32 v1, 2, v6",
 "lin4+2": "v_lshlrev_b32 v1, 2, v6\n v_add_u32 v1, 2, v1",
}
instrs = {
 "rd128": lambda i: f"ds_read_b128 v[{12+4*(i%8)}:{15+4*(i%8)}], v1 offset:{(i%8)*1024}",
 "rd64": lambda i: f"ds_read_b64 v[{12+4*(i%8)}:{13+4*(i%8)}], v1 offset:{(i%8)*1024}",
 "rd32": lambda i: f"ds_read_b32 v{12+4*(i%8)}, v1 offset:{(i%8)*1024}",
 "rd2_32": lambda i: f"ds_read2_b32 v[{12+4*(i%8)}:{13+4*(i%8)}], v1 offset0:{(i%8)*2} offset1:{(i%8)*2+1}",
 "wr128": lambda i: f"ds_write_b128 v1, v[8:11] offset:{8192+(i%8)*1024}",
 "wr64": lambda i: f"ds_write_b64 v1, v[8:9] offset:{8192+(i%8)*1024}",
 "wr32": lambda i: f"ds_write_b32 v1, v8 offset:{8192+(i%8)*1024}",
 "wr2_32": lambda i: f"ds_write2st64_b32 v1, v8, v9 offset0:{40+(i%8)*2} offset1:{40+(i%8)*2+1}",
 "wraddtid": lambda i: f"ds_write_addtid_b32 v8 offset:{8192+(i%8)*256}",
}
if on_gpu:
    out = DeviceBuffer(65536)
for iname, f in instrs.items():
  for pname, pat in pats.items():
    if iname=="wraddtid" and pname!="lin4": continue
    if iname.startswith("wr") and pname.startswith("toep"): continue
    if iname in("rd128","wr128") and (pname.startswith("lin8") or pname.startswith("lin4")): continue
    if iname in("rd64","wr64") and (pname.startswith("lin16") or pname.startswith("lin4")): continue
    if iname in("rd32","wr32","rd2_32","wr2_32") and (pname.startswith("lin16") or pname.startswith("lin8")): continue
    body = '''
    s_load_dwordx2 s[4:5], s[0:1], 0
    s_mov_b32 m0, 0
    v_and_b32 v6, 63, v0
    ; fill LDS 8KB+: dword i = (2i) | (2i+1)<<16
    v_lshlrev_b32 v3, 2, v0
    v_mov_b32 v7, 0
L_fill:
    v_lshrrev_b32 v4, 1, v3
    v_add_u32 v5, 1, v4
    v_lshlrev_b32 v5, 16, v5
    v_or_b32 v4, v4, v5
    ds_write_b32 v3, v4
    v_add_u32 v3, 1024, v3
    v_add_u32 v7, 1, v7
    v_cmp_gt_u32 vcc, 10, v7
    s_cbranch_vccnz L_fill
''' + pat + '''
    s_mov_b32 s10, 0
    s_waitcnt lgkmcnt(0)
    s_barrier
    s_memtime s[6:7]
    s_waitcnt lgkmcnt(0)
L_loop:
''' + "\n".join(f(i) for i in range(64)) + '''
    s_add_u32 s10, s10, 1
    s_cmp_lt_u32 s10, 50
    s_cbranch_scc1 L_loop
    s_waitcnt lgkmcnt(0)
    s_memtime s[8:9]
    s_waitcnt lgkmcnt(0)
    s_sub_u32 s8, s8, s6
    v_mov_b32 v2, s8
    v_lshlrev_b32 v0, 5, v0
    global_store_dword v0, v2, s[4:5]
    global_store_dword v0, v1, s[4:5] offset:4
    global_store_dwordx4 v0, v[12:15], s[4:5] offset:16
    s_waitcnt vmcnt(0)
'''
    res = []
    for blk in (256, 512):
        k = build(body, block=blk, vgpr=64, nptr=1, lds=32768)
        if not on_gpu: continue
        for rep in range(2):
            k.launch((1,1,1), (blk,1,1), kargs(out), 32768); sync()
        r = out.to_numpy(np.uint32, (blk,8))
        res.append(r[:,0].max() / (50*64) / (blk//64))
        ok = ""
        if iname.startswith("rd"):
            n = {"rd128":4,"rd64":2,"rd32":1,"rd2_32":2}[iname]
            h = r[:64,4:4+n].copy().view(np.uint16)
            exp = (r[:64,1:2]//2 + np.arange(2*n)[None,:])
            ok = "OK" if (h==exp).all() else "MISMATCH"
        k.unload()
    print(f"{iname:8s} {pname:8s} cycles/instr per CU at 4,8 waves:", ["%.2f"%x for x in res], ok if on_gpu else "")
```

```python
import re

TRANS = ("v_exp_f32","v_log_f32","v_rcp_f32","v_rsq_f32","v_sqrt_f32","v_sin_f32","v_cos_f32","v_rcp_iflag_f32")
REG_RE = re.compile(r'(?<![\w.])(-|\|)?([vas])(\d+)(?![\w\[])|(?<![\w.])([vas])\[(\d+):(\d+)\]|(?<![\w.])(vcc|exec|m0)(?![\w])')

def regs_of(opnd):
    out = set()
    for m in REG_RE.finditer(opnd):
        if m.group(2): out.add((m.group(2), int(m.group(3))))
        elif m.group(4):
            for i in range(int(m.group(5)), int(m.group(6))+1): out.add((m.group(4), i))
        else: out.add((m.group(7), 0))
    return out

class Ins:
    def __init__(self, text):
        self.text = text
        t = text.split(';')[0].strip()
        self.label = None; self.op = None; self.directive = False
        self.rd = set(); self.wr = set(); self.ops = []
        if not t: self.directive = True; return
        if t.endswith(':'): self.label = t[:-1]; return
        if t.startswith('.'): self.directive = True; return
        p = t.split(None, 1)
        self.op = op = p[0]
        rest = p[1] if len(p) > 1 else ''
        ops = []; depth = 0; cur = ''
        for ch in rest:
            if ch == '[': depth += 1
            if ch == ']': depth -= 1
            if ch == ',' and depth == 0: ops.append(cur.strip()); cur = ''
            else: cur += ch
        if cur.strip(): ops.append(cur.strip())
        if ops:
            last = ops[-1].split(None, 1)
            self.mods = last[1] if len(last) > 1 else ''
            ops[-1] = last[0]
        else: self.mods = ''
        self.ops = ops
        R = [regs_of(o) for o in ops]
        self.valu = op.startswith('v_') and not op.startswith('v_mfma')
        self.mfma = op.startswith('v_mfma')
        self.ds = op.startswith('ds_')
        self.vmem = op.startswith(('global_', 'buffer_', 'flat_'))
        self.salu = op.startswith('s_')
        self.trans = any(op.startswith(x) for x in TRANS)
        self.dpp = op.endswith('_dpp')
        self.dot = op.startswith('v_dot')
        self.srcs = []
        if self.mfma:
            self.wr = R[0]; self.A = R[1]; self.B = R[2]; self.C = R[3]; self.rd = R[1] | R[2] | R[3]
            self.passes = 8 if '32x32x16' in op else 4
        elif self.valu:
            nd = 1
            if op.startswith(('v_add_co', 'v_sub_co', 'v_addc_co', 'v_subb_co', 'v_mad_u64')): nd = 2
            if op.startswith('v_nop'): nd = 0
            for r in R[:nd]: self.wr |= r
            for r in R[nd:]: self.rd |= r
            self.srcs = R[nd:]
            if op.startswith(('v_permlane', 'v_swap')): self.wr = R[0] | R[1]; self.rd = R[0] | R[1]
            if op.startswith(('v_fmac', 'v_dot2c', 'v_writelane')) or self.dpp or op.endswith('_sdwa'): self.rd |= R[0]
            if op.startswith('v_cmpx'): raise Exception('no cmpx')
        elif self.ds:
            if op.startswith(('ds_read', 'ds_bpermute', 'ds_permute', 'ds_swizzle')) or '_rtn' in op:
                self.wr = R[0]
                for r in R[1:]: self.rd |= r
            else:
                for r in R: self.rd |= r
            if 'addtid' in op: self.rd.add(('m0', 0))
        elif self.vmem:
            if '_load' in op and 'lds' not in op:
                self.wr = R[0]
                for r in R[1:]: self.rd |= r
            elif '_atomic' in op and 'sc0' in self.mods:
                self.wr = R[0]
                for r in R[1:]: self.rd |= r
            else:
                for r in R: self.rd |= r
            self.widestore = set()
            if '_store_dwordx4' in op or '_store_dwordx3' in op:
                self.widestore = R[1] if op.startswith('global_') else R[0]
        elif self.salu:
            nodst = op.startswith(('s_cmp', 's_cbranch', 's_branch', 's_waitcnt', 's_barrier', 's_nop', 's_endpgm', 's_sleep', 's_setprio', 's_bitcmp'))
            if nodst:
                for r in R: self.rd |= r
            else:
                self.wr = set(R[0]) if R else set()
                for r in R[1:]: self.rd |= r
                if 'saveexec' in op: self.wr.add(('exec', 0))
    def ws(self):
        if self.op is None: return 0
        if self.op == 's_nop': return int(self.ops[0], 0) + 1
        return 1

def is_v(r): return r[0] in 'va' and r[0] != 'vcc'
def vset(s): return {r for r in s if r[0] in ('v', 'a')}
def sset(s): return {r for r in s if r[0] in ('s', 'vcc')}

def need(p, c):
    n = 0
    if p.op is None or c.op is None: return 0
    if p.valu:
        wv = vset(p.wr); wsg = sset(p.wr)
        if wv:
            if c.valu and c.op.startswith(('v_readlane', 'v_readfirstlane')) and wv & c.rd: n = max(n, 1)
            if c.valu and c.dpp and wv & c.rd: n = max(n, 2)
            if c.valu and c.op.startswith('v_permlane') and wv & c.rd: n = max(n, 2)
            if c.mfma and wv & c.rd: n = max(n, 3 if p.dot else 2)
            if p.trans and (c.valu or c.ds or c.vmem) and wv & c.rd: n = max(n, 1)
            if p.op.endswith('_sdwa') and c.valu and wv & (c.rd | c.wr): n = max(n, 1)
            if p.dot and (wv & (c.rd | c.wr)):
                if c.op == p.op and len(c.srcs) >= 2 and not (wv & (c.srcs[0] | c.srcs[1])): pass
                else: n = max(n, 3)
        if wsg:
            if c.valu and wsg & c.rd:
                n = max(n, 2)
                if c.op.startswith(('v_readlane', 'v_writelane')): n = max(n, 4)
            if c.vmem and wsg & c.rd: n = max(n, 5)
            if c.salu and wsg & c.rd: n = max(n, 1)
            if c.salu and c.op.startswith('s_cbranch_vcc') and ('vcc', 0) in wsg: n = max(n, 1)
    if p.mfma:
        big = 12 if p.passes == 8 else 8
        if c.mfma:
            if p.wr & (c.A | c.B): n = max(n, big)
            if p.wr & c.C and not (p.wr == c.C and p.passes == c.passes): n = max(n, big - 2)
            if p.wr & c.wr and p.wr != c.C: n = max(n, big)
        elif (c.valu or c.ds or c.vmem) and p.wr & (c.rd | c.wr): n = max(n, big)
        if c.valu and p.C & c.wr: n = max(n, 7 if p.passes == 8 else 3)
    if p.vmem and p.widestore and p.widestore & c.wr: n = max(n, 2)
    if p.salu and ('m0', 0) in p.wr and ('m0', 0) in c.rd and (c.ds or c.vmem): n = max(n, 1)
    return n

class Asm:
    def __init__(self): self.ins = []
    def __call__(self, text):
        for line in text.split('\n'):
            if line.strip(): self.ins.append(Ins(line.strip()))
    def fix_hazards(self):
        i = 0; added = 0
        def branch_srcs():
            d = {}
            for k, x in enumerate(self.ins):
                if x.op and x.op.startswith(('s_cbranch', 's_branch')): d.setdefault(x.ops[0], []).append(k)
            return d
        bs = branch_srcs()
        while i < len(self.ins):
            c = self.ins[i]
            if c.op is None: i += 1; continue
            lack = 0
            stack = [(i - 1, 0)]; seen = set()
            while stack:
                j, dist = stack.pop()
                while j >= 0 and dist < 14:
                    if (j, dist) in seen: break
                    seen.add((j, dist))
                    p = self.ins[j]
                    if p.label:
                        for k in bs.get(p.label, []): stack.append((k, dist))
                        jj = j - 1
                        while jj >= 0 and self.ins[jj].op is None and not self.ins[jj].label: jj -= 1
                        if jj >= 0 and self.ins[jj].op in ('s_branch', 's_endpgm'): break
                        j -= 1; continue
                    if p.op is None: j -= 1; continue
                    lack = max(lack, need(p, c) - dist)
                    dist += p.ws(); j -= 1
            if lack > 0:
                self.ins.insert(i, Ins(f's_nop {lack-1}')); added += 1
                bs = branch_srcs(); i += 1
            i += 1
        return added
    def text(self):
        out = []
        for x in self.ins:
            out.append(x.text if (x.label or x.directive) else '    ' + x.text)
        return '\n'.join(out) + '\n'

def check_waitcnt(asm, verbose=True):
    ins = asm.ins
    labels = {x.label: i for i, x in enumerate(ins) if x.label}
    seen = set(); problems = {}
    stack = [(0, (), ())]
    steps = 0
    while stack:
        pc, vm, lg = stack.pop()
        while pc < len(ins):
            x = ins[pc]
            if x.label:
                while vm and not vm[0]: vm = vm[1:]
                while lg and not lg[0][0] and not lg[0][1]: lg = lg[1:]
                key = (pc, vm, lg)
                if key in seen: break
                seen.add(key)
            if x.op is None: pc += 1; continue
            steps += 1
            if steps > 5000000: raise Exception("too many steps")
            touched = x.rd | x.wr
            for d in vm:
                if d & touched and not (x.vmem and d & x.wr and not d & x.rd and False): problems[pc] = ('vm', d & touched)
            for d, sm in lg:
                if d & touched and not (x.ds and not sm and not (d & x.rd)): problems[pc] = ('lgkm', d & touched)
            if x.op == 's_waitcnt':
                t = x.text
                m = re.search(r'vmcnt\((\d+)\)', t)
                if m:
                    n = int(m.group(1)); vm = vm[len(vm)-n:] if n < len(vm) else vm
                    if n == 0: vm = ()
                m = re.search(r'lgkmcnt\((\d+)\)', t)
                if m:
                    n = int(m.group(1))
                    if n == 0: lg = ()
                    elif not any(sm for _, sm in lg): lg = lg[len(lg)-n:] if n < len(lg) else lg
            elif x.vmem: vm = vm + (frozenset(x.wr),)
            elif x.ds: lg = lg + ((frozenset(x.wr), False),)
            elif x.op.startswith(('s_load', 's_memtime', 's_memrealtime')): lg = lg + ((frozenset(x.wr), True),)
            if x.op == 's_endpgm': break
            if x.op == 's_branch': pc = labels[x.ops[0]]; continue
            if x.op.startswith('s_cbranch'): stack.append((labels[x.ops[0]], vm, lg))
            pc += 1
    for pc, p in sorted(problems.items()):
        print("WAITCNT?", pc, ins[pc].text, p)
    return problems

def sizes(asm):
    import subprocess, tempfile, os
    src = '.amdgcn_target "amdgcn-amd-amdhsa--gfx950"\n.text\n' + asm.text() + 'L_table:\n'
    d = tempfile.mkdtemp(); open(d+'/a.s', 'w').write(src)
    r = subprocess.run(['clang', '-x', 'assembler', '-target', 'amdgcn-amd-amdhsa', '-mcpu=gfx950', '-c', d+'/a.s', '-o', d+'/a.o'], capture_output=True, text=True)
    if r.returncode: print(r.stderr[:3000]); raise SystemExit(1)
    o = subprocess.run(['llvm-objdump', '-d', '--mcpu=gfx950', d+'/a.o'], capture_output=True, text=True).stdout
    sz = []
    for l in o.splitlines():
        m = re.search(r'//\s*([0-9A-F]{12}):((?: [0-9A-F]{8})+)', l)
        if m: sz.append(4*len(m.group(2).split()))
    real = [x for x in asm.ins if x.op]
    assert len(sz) == len(real), (len(sz), len(real))
    for x, s in zip(real, sz): x.size = s

def align_pass(asm, minrun=4):
    sizes(asm)
    real = [x for x in asm.ins if x.op]
    off = 0; fixes = 0; i = 0
    while i < len(real):
        x = real[i]
        if x.size == 8 and off % 8 == 4:
            j = i
            while j < len(real) and real[j].size == 8: j += 1
            nv = sum(1 for y in real[i:j] if not y.mfma)
            if sum(1 for y in real[i:j] if y.mfma)*3 > j-i: nv = 0
            if nv >= minrun:
                k = i - 1
                while k >= 0 and real[k].size == 4:
                    y = real[k]
                    if y.valu and not y.op.startswith(('v_readfirstlane', 'v_permlane', 'v_nop', 'v_cmp')) and not y.op.endswith('_e64'):
                        y.text = y.text.replace(y.op, y.op + '_e64', 1); y.size = 8; off += 4; fixes += 1
                        break
                    k -= 1
                else:
                    if nv >= 8:
                        idx = asm.ins.index(x); n = Ins('s_nop 0'); n.size = 4
                        asm.ins.insert(idx, n); off += 4; fixes += 1
            off += 8*(j-i); i = j; continue
        off += x.size; i += 1
    return fixes
```

```python
import sys, struct
from asmlib import Asm, check_waitcnt, align_pass

NAME = "sequential_preLN__ssm_conv_s4__moe_arch_mod__prompt"
STAMPS = "--stamps" in sys.argv
def opt(name, default):
    for x in sys.argv:
        if x.startswith("--"+name+"="): return int(x.split("=")[1])
    return default
NPRE = opt("npre", 12)
NFL = opt("nfl", 4)
WSTART = opt("wstart", 0)
FLM = opt("flm", 0)
PACE1 = opt("pace1", 0); PACE2 = opt("pace2", 1); PACE3 = opt("pace3", 1); PACE4 = opt("pace4", 1)
TROW = opt("trow", 2); LATE = opt("late", 1); YT0 = opt("ytouch", 1)
SHPRIO = opt("shprio", 0)
NX = opt("nx", 0)

WS_S3  = 0x100000
WS_F5  = 0x110000
WS_P4  = 0x120000
WS_R3  = 0x180000
WS_FL2 = 0x200000
WS_U1  = 0x400000
WS_Y2  = 0x600000
WS_DBG = 0x800000
C_XT, C_T, C_YT, C_ST, C_SG, C_PUB, M_KEY, C_U = 0, 4, 12, 16, 20, 24, 32, 48
M_TAG = 28; M_GU = 64; M_ZERO = 192; M_XS = 384
L_T = 1408; T_CH = 23*256
TR_ROW = 272; TR_W = 54*TR_ROW
L_TR = L_T + 2*T_CH
M0X = 50688
KC_ROW = 288
L_U  = L_TR + 8*TR_W; U_CH = 4288
L_XT = L_U + 2*U_CH; XT_ROW = 912
LDS_SIZE = L_XT + 8*XT_ROW + 128
L_ST = L_T; WG_ROW = 272; WD_ROW = 912
assert L_ST + 448*WG_ROW <= L_XT and L_U % 128 == 0 and L_TR % 16 == 0
SPIN = 0x40000

def f2u(x): return struct.unpack("<I", struct.pack("<f", x))[0]
def v(i, n=1): return f"v{i}" if n == 1 else f"v[{i}:{i+n-1}]"

a = Asm()
sX, sAR, sAI, sBR, sBI, sCR, sCI, sLD = [f"s[{4+2*i}:{5+2*i}]" for i in range(8)]
sDK, sBX, sWR, sWG, sWU, sWD, sOUT, sDBG = [f"s[{20+2*i}:{21+2*i}]" for i in range(8)]
sWS = "s[36:37]"
sXG, sRANK, sQ, sP, sW, sTAG = "s38", "s39", "s40", "s41", "s42", "s43"
sPC = "s[44:45]"; sE56 = "s[46:47]"; sE28 = "s[48:49]"
sCW, sF, sIDX = "s50", "s51", "s52"
sCNT = "s54"; sT0, sT1, sT2, sT3 = "s55", "s56", "s57", "s58"
sKEY = "s59"
sC2 = "s[92:93]"; sSEL0, sSEL1 = "s94", "s95"
vLANE = 1; vL16 = 18; vTAG = 19; vMISC = 11; vONE = 16
vPAR = 216

STSET = [x[5:].split(',') for x in sys.argv if x.startswith('--st=')]
STSET = set(int(t) for t in STSET[0]) if STSET else None
def stamp(i):
    if STSET is not None and i not in STSET and i != 12: return
    if STAMPS: a(f"s_memrealtime s[88:89]\ns_memtime s[90:91]\ns_waitcnt lgkmcnt(0)\ns_mov_b32 s{62+i}, s88\ns_mov_b32 s{75+i}, s90")
def emit(lst):
    for x in lst: a(x)
def unpack(dst, src, n):
    out = []
    for i in range(n):
        out.append(f"v_lshlrev_b32 {v(dst+2*i)}, 16, {v(src+i)}")
        out.append(f"v_and_b32 {v(dst+2*i+1)}, 0xffff0000, {v(src+i)}")
    return out
def unpack_add(dst, src, n, c, neg=False):
    m = " neg_lo:[0,0,1]" if neg else ""
    out = []
    for i in range(n):
        out.append(f"v_dot2_f32_bf16 {v(dst+2*i)}, {v(src+i)}, {sSEL0}, {v(c(2*i))}{m}")
        out.append(f"v_dot2_f32_bf16 {v(dst+2*i+1)}, {v(src+i)}, {sSEL1}, {v(c(2*i+1))}{m}")
    return out
DM = "row_mask:0xf bank_mask:0xf"
def arrive(off):
    a(f"s_mov_b64 exec, 1\nds_add_u32 {v(vMISC)}, {v(vONE)} offset:{off}\ns_mov_b64 exec, -1")
def spin(name, off, n, tmp, reads=(), base=None):
    a(f"s_mov_b32 {sCNT}, 0")
    a(f"L_{name}:")
    a(f"ds_read_b32 {v(tmp)}, {v(vMISC if base is None else base)} offset:{off}")
    emit(reads)
    a(f"s_add_u32 {sCNT}, {sCNT}, 1")
    a(f"s_cmp_gt_u32 {sCNT}, {SPIN*4}")
    a("s_waitcnt lgkmcnt(0)")
    a(f"v_cmp_gt_u32 vcc, {n}, {v(tmp)}")
    a(f"s_cbranch_scc1 L_{name}_x")
    a(f"s_cbranch_vccnz L_{name}")
    a(f"L_{name}_x:")
def checks_to_vcc(checks):
    for i, (r, kind) in enumerate(checks):
        dst = "vcc" if i == 0 else "s[60:61]"
        if kind == 'tag': a(f"v_cmp_ne_u32 {dst}, {v(r)}, {v(vTAG)}")
        else: a(f"v_cmp_eq_u32 {dst}, -1, {v(r)}")
        if i: a("s_or_b64 vcc, vcc, s[60:61]")
def poll(name, loads, check, restore="-1", issued=False):
    a(f"s_mov_b32 {sCNT}, 0")
    if issued: a(f"s_branch L_{name}_w")
    a(f"L_{name}:")
    emit(loads)
    a(f"L_{name}_w:")
    a(f"s_add_u32 {sCNT}, {sCNT}, 1")
    a(f"s_cmp_gt_u32 {sCNT}, {SPIN}")
    a("s_waitcnt vmcnt(0)")
    a(f"s_cbranch_scc1 L_{name}_x")
    check()
    a("s_and_b64 exec, exec, vcc")
    a(f"s_cbranch_execnz L_{name}")
    a(f"L_{name}_x:")
    a(f"s_mov_b64 exec, {restore}")
def poll_fast(name, loads, check, restore="-1", cnt=0):
    a(f"s_waitcnt vmcnt({cnt})")
    check()
    a(f"s_cbranch_vccnz L_{name}_retry")
    a(f"L_{name}_ok:")
    def tail():
        a(f"L_{name}_retry:")
        a("s_and_b64 exec, exec, vcc")
        poll(name, loads, check, restore)
        a(f"s_branch L_{name}_ok")
    TAILS.append(tail)
TAILS = []
def tagcheck(regs, tmp):
    def f():
        if len(regs) == 1: a(f"v_cmp_ne_u32 vcc, {v(regs[0])}, {v(vTAG)}"); return
        a(f"v_xor_b32 {v(tmp)}, {v(regs[0])}, {v(vTAG)}")
        for r in regs[1:]: a(f"v_bitop3_b32 {v(tmp)}, {v(r)}, {v(vTAG)}, {v(tmp)} bitop3:0xbe")
        a(f"v_cmp_ne_u32 vcc, 0, {v(tmp)}")
    return f
def sentcheck(regs, tmp):
    def f():
        if len(regs) == 2: a(f"v_max_u32 {v(tmp)}, {v(regs[0])}, {v(regs[1])}\nv_cmp_eq_u32 vcc, -1, {v(tmp)}")
        else: a(f"v_cmp_eq_u32 vcc, -1, {v(regs[0])}")
    return f
def make_tag():
    a(f"""
v_readfirstlane_b32 {sTAG}, {v(vTAG)}
s_mul_i32 {sTAG}, {sTAG}, 1664525
s_add_u32 {sTAG}, {sTAG}, 1013904223
v_mov_b32 {v(vTAG)}, {sTAG}
""")
def lines(t): return [x for x in t.strip().split("\n") if x.strip()]

z1, z2, z4, z6, z8, z256, z512, z768, z1024, t0, t1, La, Lb = [24+2*i for i in range(13)]
cv = [50, 51, 52, 53]; vAB = 58; vDT = 60; vRD = 62; vTW = 63
FR = 64; KACC = 200; vPAR2 = 240
def cmul(D, X, Y):
    return [f"v_pk_mul_f32 {v(D,2)}, {v(X,2)}, {v(Y,2)} op_sel:[0,0] op_sel_hi:[0,1]",
            f"v_pk_fma_f32 {v(D,2)}, {v(X,2)}, {v(Y,2)}, {v(D,2)} op_sel:[1,1,0] op_sel_hi:[1,0,1] neg_lo:[1,0,0]"]
cvi = [0]
def put(row, X, off):
    c = cv[cvi[0] % 4]; cvi[0] += 1
    return [f"v_cvt_pk_bf16_f32 {v(c)}, {v(X)}, {'-' if row >= 22 else ''}{v(X+1)}", f"ds_write_addtid_b32 {v(c)} offset:{off+row*TR_ROW}"]
def two_direct(P, m0_, Z0, m1_, Z1):
    o = [f"v_pk_mul_f32 {v(vAB,2)}, {v(P,2)}, {v(vDT,2)}",
         f"v_mul_f32 {v(t0)}, {hex(f2u(m1_))}, {v(vAB)}",
         f"v_mul_f32 {v(t0+1)}, {hex(f2u(m1_))}, {v(vAB+1)}"]
    if m0_ != 1: o += [f"v_mul_f32 {v(vAB)}, {hex(f2u(m0_))}, {v(vAB)}", f"v_mul_f32 {v(vAB+1)}, {hex(f2u(m0_))}, {v(vAB+1)}"]
    o += lines(f"""
v_fract_f32 {v(t0+1)}, {v(t0+1)}
v_fract_f32 {v(vAB+1)}, {v(vAB+1)}
v_exp_f32 {v(vAB)}, {v(vAB)}
v_cos_f32 {v(Z0)}, {v(vAB+1)}
v_sin_f32 {v(Z0+1)}, {v(vAB+1)}
v_exp_f32 {v(t0)}, {v(t0)}
v_cos_f32 {v(Z1)}, {v(t0+1)}
v_sin_f32 {v(Z1+1)}, {v(t0+1)}
v_pk_mul_f32 {v(Z0,2)}, {v(Z0,2)}, {v(vAB,2)} op_sel_hi:[1,0]
""")
    o += cmul(La, P+2, P+4)
    o += [f"v_pk_mul_f32 {v(Z1,2)}, {v(Z1,2)}, {v(t0,2)} op_sel_hi:[1,0]",
          f"v_pk_mul_f32 {v(La,2)}, {v(La,2)}, {v(56,2)} op_sel_hi:[1,0]"]
    return o
def kgen_dt():
    a(f"""
s_lshl_b32 {sT0}, s53, 16
s_and_b32 {sT1}, s53, 0xffff0000
s_cmp_lt_u32 {sCW}, 2
s_cselect_b32 {sT0}, {sT0}, {sT1}
v_mov_b32 v56, s92
v_mul_f32 v56, {sT0}, v56
v_exp_f32 v56, v56
v_cvt_pk_bf16_f32 v56, v56, v56
v_and_b32 v56, 0xffff0000, v56
v_pk_mul_f32 {v(vDT,2)}, v[56:57], {sC2} op_sel_hi:[0,1]
v_mul_f32 v56, {hex(f2u(2.0**(68-95)))}, v56
""")
def kgen_rows(off, nL):
    o = two_direct(vPAR, 1, z1, 256.0, z256)
    rows = [([], 1, z1), (cmul(z2, z1, z1), 2, z2), (cmul(z4, z2, z2), 4, z4), (cmul(z6, z4, z2), 6, z6), (cmul(z8, z4, z4), 8, z256),
            (cmul(t0, z2, z1), 3, t0), (cmul(t0, z4, z1), 5, t0), (cmul(t0, z6, z1), 7, t0),
            (cmul(t0, z256, z2), 9, t0), (cmul(t0, z256, z4), 10, t0), (cmul(t0, z256, z6), 11, t0),
            (cmul(z512, z256, z256), 12, z512), (cmul(t0, z512, z4), 13, t0), (cmul(z768, z512, z256), 14, z768), (cmul(t0, z768, z4), 15, t0),
            (cmul(z1024, z512, z512), 16, z1024), (cmul(t0, z1024, z256), 17, t0), (cmul(t0, z1024, z512), 18, t0),
            (cmul(t0, z1024, z768), 20, t0), (cmul(t0, z1024, z1024), 21, t0)]
    cur, nxt = La, Lb
    rows.append(([], 22, cur))
    for j in range(1, nL):
        rows.append((cmul(nxt, cur, z8), 22+j, nxt)); cur, nxt = nxt, cur
    for ops, row, X in rows: o += ops + put(row, X, off)
    return o
def kgen_reads(off):
    o = []
    for s in range(8):
        o.append(f"ds_read_b128 {v(FR+8*s,4)}, {v(vRD)} offset:{off+32*s}")
        o.append(f"ds_read_b128 {v(FR+8*s+4,4)}, {v(vRD)} offset:{off+22*TR_ROW+32*s}")
    return o
def kmfma(s, first): return f"v_mfma_f32_32x32x16_bf16 {v(KACC,16)}, {v(FR+8*s,4)}, {v(FR+8*s+4,4)}, {'0' if first else v(KACC,16)}"
def gran(base, GV, kmap, vKW, off):
    for r in range(4):
        for i in range(4):
            a(f"v_cvt_pk_bf16_f32 {v(base+4*r+i)}, {v(GV+2*kmap[7+r-2*i])}, {v(GV+2*kmap[6+r-2*i])}")
        a(f"ds_write_b128 {v(vKW)}, {v(base+4*r,4)} offset:{64*r+off}")

vX = 2; vPV = 148; ZD = 128; vMD = 144; vRI = 146; vOA = 10; vL28 = 179; DW = 224; vTB2 = 240
a(f"""
s_load_dwordx16 s[4:19], s[0:1], 0
s_load_dwordx2 s[36:37], s[0:1], 128
s_load_dwordx16 s[20:35], s[0:1], 64
s_getpc_b64 {sPC}
L_pc:
s_cmp_ge_u32 s2, 256
s_cbranch_scc1 L_end
s_lshr_b32 {sRANK}, s2, 3
s_and_b32 {sT0}, {sRANK}, 7
s_lshl_b32 {sT0}, {sT0}, 12
v_lshl_add_u32 v21, v0, 7, {sT0}
v_min_u32 v21, L_table+8188-L_pc, v21
v_cmp_gt_u32 vcc, 32, v0
s_and_b64 exec, exec, vcc
s_cbranch_execz L_nopf
global_load_dword v255, v21, {sPC}
L_nopf:
s_mov_b64 exec, -1
v_lshrrev_b32 v20, 6, v0
v_and_b32 {v(vLANE)}, 63, v0
s_and_b32 {sXG}, s2, 7
v_readfirstlane_b32 {sW}, v20
s_lshl_b32 {sQ}, {sXG}, 5
s_add_u32 {sQ}, {sQ}, {sRANK}
s_mul_i32 {sP}, {sXG}, 28
s_add_u32 {sP}, {sP}, {sRANK}
s_min_u32 {sP}, {sP}, 223
v_mov_b32 v11, 0
s_and_b32 {sCW}, {sW}, 3
v_lshlrev_b32 {v(vL16)}, 4, {v(vLANE)}
s_mov_b32 s46, -1
s_mov_b32 s47, 0xffffff
s_lshl_b32 {sT0}, {sQ}, 13
s_lshl_b32 {sT3}, {sCW}, 11
s_add_u32 {sT0}, {sT0}, {sT3}
s_add_u32 {sT0}, {sT0}, {WS_U1}
v_add_u32 v15, {sT0}, {v(vL16)}
s_lshl_b32 {sT0}, {sP}, 10
s_lshl_b32 {sT1}, {sCW}, 8
s_add_u32 {sT0}, {sT0}, {sT1}
v_lshl_add_u32 v12, {v(vLANE)}, 2, {sT0}
s_add_u32 {sT1}, {sT3}, L_table-L_pc
v_add_u32 v14, {sT1}, {v(vL16)}
""")
if STAMPS:
    for i in range(1, 13): a(f"s_mov_b32 s{62+i}, 0")
    a("s_memrealtime s[88:89]\ns_memtime s[90:91]")
def stamp0():
    if STAMPS: a("s_mov_b32 s62, s88\ns_mov_b32 s75, s90")
def ploads(dst, hi):
    for i, sb in enumerate((sAR, sAI, sBR, sBI, sCR, sCI)):
        a(f"global_load_short_d16_hi {v(dst+i)}, v12, {sb} offset:2" if hi else f"global_load_dword {v(dst+i)}, v12, {sb}")
def ld_load():
    a(f"s_lshl_b32 {sT0}, {sP}, 2\ns_load_dword s53, {sLD}, {sT0}")
a(f"""
s_cmp_lt_u32 {sW}, 4
s_cbranch_scc0 L_I
""")
a("s_waitcnt lgkmcnt(0)")
ploads(vPAR2, 0)
a("s_branch L_C")
a(f"""
L_I:
s_setprio 2
s_mov_b64 exec, 1
s_waitcnt lgkmcnt(0)
global_load_dword {v(vTAG)}, v11, {sWS} sc1
s_mov_b64 exec, -1
""")
ploads(vPAR, 0)
ld_load()
a(f"""
v_bfe_u32 v20, v0, 5, 3
s_lshl_b32 {sT0}, {sQ}, 3
v_add_u32 v23, {sT0}, v20
v_sub_u32 v178, 2047, v23
v_mul_u32_u24 v23, 896, v23
v_and_b32 {v(vL28)}, 0x1f0, {v(vL16)}
v_add_u32 {v(vOA)}, {v(vL28)}, v23
s_mov_b32 s48, 0xfffffff
s_mov_b32 s49, 0xfffffff
""")
vXW, vTRA, vSA, vFA, vDA, vUW = 166, 167, 15, 169, 170, 172
WF = 150; vSW = 149; vYA = 173; vYW = 175; vKL = 178; vFA2 = 177; vCF = 168
G = 96; SL = 108; vRA = 188; vSA3 = 189; vFA5 = 190
T1 = 96; UP = 80; UF = 64; TRO = 88
def dw_loads():
    a(f"""
s_mov_b64 exec, {sE28}
global_load_dwordx4 {v(DW,4)}, {v(vL28)}, {sDK}
global_load_dwordx4 {v(DW+4,4)}, {v(vL28)}, {sDK} offset:448
global_load_dwordx4 {v(DW+8,4)}, {v(vL28)}, {sWR}
global_load_dwordx4 {v(DW+12,4)}, {v(vL28)}, {sWR} offset:448
s_mov_b64 exec, -1
""")
stamp0()
a(f"""
s_mov_b32 {sSEL0}, 0x3f80
s_mov_b32 {sSEL1}, 0x3f800000
v_mov_b32 {v(vONE)}, 1
v_mul_u32_u24 {v(vXW)}, {XT_ROW}, v20
s_mov_b32 {sT1}, {L_XT}
v_add3_u32 {v(vXW)}, {v(vXW)}, {v(vL28)}, {sT1}
v_bfe_u32 v24, {v(vLANE)}, 2, 2
v_mul_u32_u24 {v(vTRA)}, {XT_ROW}, v24
v_lshrrev_b32 v24, 4, {v(vLANE)}
v_lshl_add_u32 {v(vTRA)}, v24, 5, {v(vTRA)}
v_and_b32 v24, 3, {v(vLANE)}
v_lshlrev_b32 v24, 3, v24
s_mul_i32 {sT0}, {sCW}, 224
s_add_u32 {sT0}, {sT0}, {L_XT}
v_add3_u32 {v(vTRA)}, {v(vTRA)}, v24, {sT0}
v_lshrrev_b32 v24, 1, {v(vLANE)}
v_and_b32 v25, 1, {v(vLANE)}
v_mul_u32_u24 {v(vYW)}, {4*XT_ROW}, v25
v_lshlrev_b32 v26, 2, v24
v_add3_u32 {v(vYW)}, {v(vYW)}, v26, {sT0}
s_lshl_b32 {sT0}, {sCW}, 19
s_lshl_b32 {sT2}, {sXG}, 10
s_add_u32 {sT0}, {sT0}, {sT2}
s_add_u32 {sT0}, {sT0}, {WS_U1}
s_lshl_b32 {sT2}, {sRANK}, 5
s_add_u32 {sT0}, {sT0}, {sT2}
v_lshlrev_b32 v26, 4, v25
v_lshl_add_u32 v26, v24, 13, v26
v_add_u32 {v(vDA)}, {sT0}, v26
v_add_u32 {v(vDA+1)}, 0x40000, {v(vDA)}
s_mul_i32 {sT0}, {sCW}, {56*8192}
s_lshl_b32 {sT2}, {sQ}, 5
s_add_u32 {sT0}, {sT0}, {sT2}
s_add_u32 {sT0}, {sT0}, {WS_Y2}
v_add_u32 {v(vYA)}, {sT0}, v26
v_add_u32 {v(vYA+1)}, {28*8192}, {v(vYA)}
v_mul_u32_u24 {v(vUW)}, {U_CH}, v25
v_lshlrev_b32 v24, 4, v24
s_lshl_b32 {sT0}, {sCW}, 10
s_add_u32 {sT0}, {sT0}, {L_U+128}
v_add3_u32 {v(vUW)}, {v(vUW)}, v24, {sT0}
s_lshl_b32 {sT0}, {sQ}, 11
s_add_u32 {sT0}, {sT0}, {WS_R3}
v_add_u32 {v(vRA)}, {sT0}, {v(vL28)}
s_lshl_b32 {sT0}, {sQ}, 7
s_add_u32 {sT0}, {sT0}, {WS_S3}
v_add_u32 {v(vSA3)}, {sT0}, {v(vL16)}
v_add_u32 {v(vFA5)}, {WS_F5-WS_S3}, {v(vSA3)}
s_lshl_b32 {sT0}, {sCW}, 2
v_mov_b32 {v(vCF)}, {sT0}
s_mul_i32 {sT0}, {sCW}, {TR_W}
s_add_u32 m0, {sT0}, {L_TR+4*TR_W-M0X}
v_mov_b32 v22, 0x3f80
s_mov_b32 s92, {hex(f2u(1.4426950408889634))}
s_mov_b32 s93, {hex(f2u(0.15915494309189535))}
ds_write_addtid_b32 v22 offset:{M0X}
v_mov_b32 {v(T1+4)}, 0
v_mov_b32 {v(T1+5)}, 0
s_lshl_b32 {sT0}, {sCW}, 10
v_add_u32 v17, {sT0}, {v(vL16)}
s_lshl_b32 {sT1}, {sP}, 13
s_add_u32 {sT1}, {sT1}, {WS_Y2+4096}
v_add_u32 v191, {sT1}, v17
v_add_u32 v17, {L_TR+4*TR_W}, v17
s_mov_b64 exec, {sE28}
global_load_dwordx4 {v(vX,4)}, {v(vOA)}, {sX}
global_load_dwordx4 {v(vX+4,4)}, {v(vOA)}, {sX} offset:448
global_load_short_d16_hi {v(vPV)}, v23, {sX}
s_mov_b64 exec, -1
v_lshlrev_b32 v13, 3, v25
s_barrier
s_waitcnt lgkmcnt(0)
""")
kgen_dt()
a("s_waitcnt vmcnt(9)")
make_tag()
PAT = 196; sM2 = "s52"
a(f"s_mov_b32 {sM2}, 0x60006000\nv_lshrrev_b32 v13, v13, {v(vTAG)}")
for i in range(4): a(f"v_lshlrev_b32 {v(PAT+i)}, {13-2*i}, v13")
for i in range(4): a(f"v_and_b32 {v(PAT+i)}, {sM2}, {v(PAT+i)}")
for i in range(4): a(f"v_mov_b32 {v(SL+i)}, {sTAG}")
a("s_waitcnt vmcnt(3)")
stamp(11)
for i in range(6): a(f"v_and_b32 {v(vPAR+i)}, 0xffff0000, {v(vPAR+i)}")
a(f"""
s_cmp_ge_u32 {sRANK}, 28
s_cbranch_scc1 L_I_ln1
""")
rowsI = kgen_rows(M0X, 32-NX)
def cut(rows, n):
    k = 0
    for i, x in enumerate(rows):
        if x.startswith("ds_"):
            k += 1
            if k == n: return i+1
c1 = cut(rowsI, NPRE); c2 = cut(rowsI, NPRE+NFL); c3 = cut(rowsI, NPRE+NFL+8)
emit(rowsI[:c1])
a(f"global_load_dwordx4 {v(vTB2,4)}, v14, {sPC} offset:1024\ns_waitcnt vmcnt(1)\ns_branch L_I_ln1b")
a(f"L_I_ln1:\ns_waitcnt vmcnt(0)\nL_I_ln1b:\ns_mov_b64 exec, {sE28}")
stamp(1)
def sums(D, T, W=None):
    S1, S2, S3 = T+4, T+5, T+8
    a(f"v_pk_add_f32 {v(T,2)}, {v(D,2)}, {v(D+2,2)}")
    a(f"v_pk_mul_f32 {v(T+2,2)}, {v(D,2)}, {v(D,2)}")
    if W: a(f"v_pk_mul_f32 {v(T+6,2)}, {v(D,2)}, {v(W,2)}")
    for i in range(1, 8):
        if i > 1: a(f"v_pk_add_f32 {v(T,2)}, {v(T,2)}, {v(D+2*i,2)}")
        a(f"v_pk_fma_f32 {v(T+2,2)}, {v(D+2*i,2)}, {v(D+2*i,2)}, {v(T+2,2)}")
        if W: a(f"v_pk_fma_f32 {v(T+6,2)}, {v(D+2*i,2)}, {v(W+2*i,2)}, {v(T+6,2)}")
    a(f"v_add_f32 {v(S1)}, {v(T)}, {v(T+1)}")
    a(f"v_add_f32 {v(S2)}, {v(T+2)}, {v(T+3)}")
    if W: a(f"v_add_f32 {v(S3)}, {v(T+6)}, {v(T+7)}")
    a("s_mov_b64 exec, -1")
    for st in (8, 4, 2, 1):
        for r in ([S1, S2, S3] if W else [S1, S2]): a(f"v_add_f32_dpp {v(r)}, {v(r)}, {v(r)} row_ror:{st} {DM}")
INV = hex(f2u(1.0/448)); EPS = hex(f2u(1e-5))
emit(unpack_add(ZD, vX, 8, lambda i: vPV, neg=True))
sums(ZD, T1)
a(f"""
v_mov_b32 {v(T1)}, {v(T1+4)}
v_mov_b32 {v(T1+1)}, {v(T1+5)}
v_permlane16_swap_b32 {v(T1)}, {v(T1+4)}
v_permlane16_swap_b32 {v(T1+1)}, {v(T1+5)}
v_pk_add_f32 {v(T1,2)}, {v(T1,2)}, {v(T1+4,2)}
v_mul_f32 {v(vMD)}, {INV}, {v(T1)}
v_mul_f32 {v(T1+1)}, {INV}, {v(T1+1)}
v_fma_f32 {v(T1+1)}, -{v(vMD)}, {v(vMD)}, {v(T1+1)}
v_max_f32 {v(T1+1)}, 0, {v(T1+1)}
v_add_f32 {v(T1+1)}, {EPS}, {v(T1+1)}
v_rsq_f32 {v(vRI)}, {v(T1+1)}
s_mov_b64 exec, {sE28}
v_mul_f32 {v(T1+2)}, {hex(f2u(2.0**-68))}, {v(vRI)}
v_mul_f32 {v(T1+3)}, {v(vMD)}, {v(T1+2)}
""")
for h in range(2):
    for i in range(4*h, 4*h+4):
        a(f"v_pk_fma_f32 {v(UF+2*i,2)}, {v(ZD+2*i,2)}, {v(T1+2,2)}, {v(T1+2,2)} op_sel:[0,0,1] op_sel_hi:[1,0,1] neg_lo:[0,0,1] neg_hi:[0,0,1]")
    for i in range(4*h, 4*h+4):
        a(f"v_cvt_pk_bf16_f32 {v(UP+i)}, {v(UF+2*i)}, {v(UF+1+2*i)}")
a(f"""
ds_write_b128 {v(vXW)}, {v(UP,4)}
ds_write_b128 {v(vXW)}, {v(UP+4,4)} offset:448
s_mov_b64 exec, 1
ds_add_u32 {v(vMISC)}, {v(vONE)} offset:{C_XT}
s_mov_b64 exec, -1
""")
spin("sxt", C_XT, 4, UF, [f"ds_read_b64_tr_b16 {v(TRO,2)}, {v(vTRA)}", f"ds_read_b64_tr_b16 {v(TRO+2,2)}, {v(vTRA)} offset:{4*XT_ROW}",
                          f"ds_read_b64_tr_b16 {v(TRO+4,2)}, {v(vTRA)} offset:112", f"ds_read_b64_tr_b16 {v(TRO+6,2)}, {v(vTRA)} offset:{4*XT_ROW+112}"])
vFL = 176; UD = 180
flag_loads = [f"global_load_dword {v(vFL)}, {v(vFA)}, {sWS} offset:896 sc1"]
flag2_loads = [f"global_load_dword {v(vFL)}, {v(vFA2)}, {sWS} sc1"]
data_loads = [f"global_load_dwordx4 {v(UD,4)}, {v(vDA)}, {sWS} sc1", f"global_load_dwordx4 {v(UD+4,4)}, {v(vDA+1)}, {sWS} sc1"]
a(f"s_mov_b64 exec, {sE56}")
for i in range(8): a(f"v_bfi_b32 {v(TRO+i)}, {sM2}, {v(PAT+i%4)}, {v(TRO+i)}")
a(f"""
global_store_dwordx4 {v(vSA)}, {v(TRO,4)}, {sWS} sc1
global_store_dwordx4 {v(vSA)}, {v(TRO+4,4)}, {sWS} offset:1024 sc1
s_mov_b64 exec, -1
""")
stamp(2)
a(f"""
s_cmp_ge_u32 {sRANK}, 28
s_cbranch_scc1 L_I_spare
""")
nI = 52-NX
c4 = cut(rowsI, nI-NFL) if NFL else len(rowsI)
emit(rowsI[c1:c4])
if PACE1: a("s_waitcnt vmcnt(0)")
emit(data_loads)
emit(rowsI[c4:])
a("s_waitcnt lgkmcnt(0)")
stamp(10)
a("s_barrier")
def ucheck(joint, UD=UD):
    def f():
        for i in range(8): a(f"v_xor_b32 {v(UD+i)}, {v(UD+i)}, {v(PAT+i%4)}")
        a(f"""
v_or3_b32 {v(vFL)}, {v(UD)}, {v(UD+1)}, {v(UD+2)}
v_or3_b32 v13, {v(UD+3)}, {v(UD+4)}, {v(UD+5)}
v_or3_b32 {v(vFL)}, {v(vFL)}, {v(UD+6)}, {v(UD+7)}
v_bitop3_b32 {v(vFL)}, {v(vFL)}, v13, {sM2} bitop3:0xa8
v_cmp_ne_u32 vcc, 0, {v(vFL)}
""")
        if joint: a("s_wqm_b64 vcc, vcc")
    return f
a("s_waitcnt vmcnt(0)")
ucheck(False)()
a("s_cbranch_vccnz L_p1d_retry\nL_p1d_ok:")
stamp(3)
def tail():
    a("L_p1d_retry:\ns_wqm_b64 exec, vcc")
    poll("p1d", data_loads, ucheck(True))
    a("s_branch L_p1d_ok")
TAILS.append(tail)
a(f"""
ds_write_b128 {v(vUW)}, {v(UD,4)}
ds_write_b128 {v(vUW)}, {v(UD+4,4)} offset:512
""")
arrive(C_U)
a(f"s_setprio {SHPRIO}")
def passB():
    a(f"""
v_lshrrev_b32 v40, 16, {v(vTB2+1)}
v_and_b32 v41, 0xffff, {v(vTB2+2)}
v_lshrrev_b32 v42, 16, {v(vTB2+2)}
v_and_b32 v43, 0xffff, {v(vTB2+3)}
v_lshrrev_b32 v44, 16, {v(vTB2+3)}
s_lshr_b32 {sT0}, {sCW}, 1
s_lshl_b32 {sT0}, {sT0}, 2
v_mov_b32 v45, {sT0}
""")
    stamp(4)
    spin("stb", C_T, 2, 46, [f"ds_read_b64 {v(24+2*k,2)}, {v(40+k)}" for k in range(4)], base=45)
    for k in range(4): a(f"v_add_f32 {v(24+2*k)}, {v(24+2*k)}, {v(25+2*k)}")
    gran(68, 24, [0]+[1]*6+[2]+[3]*3, 44, 16*KC_ROW)
if LATE: passB()
if YT0:
    a(f"""
v_not_b32 v192, {v(PAT)}
global_store_dwordx4 v191, v[192:195], {sWS} offset:-4096 sc1
global_store_dwordx4 v191, v[192:195], {sWS} sc1
""")
a(f"""
s_mov_b64 s[60:61], {sWD}
s_cmp_eq_u32 {sXG}, 7
s_cbranch_scc1 L_I_sh
s_cmp_eq_u32 {sCW}, 3
s_cbranch_scc1 L_I_sh
s_lshl_b32 {sT0}, {sP}, 13
v_lshl_add_u32 v45, {v(vLANE)}, 7, {sT0}
s_cmp_eq_u32 {sCW}, 2
s_cbranch_scc1 L_I_pf
v_lshrrev_b32 v45, 2, {v(vLANE)}
v_mul_u32_u24 v45, {3584-512}, v45
v_lshl_add_u32 v45, {v(vLANE)}, 7, v45
s_mul_i32 {sT0}, {sRANK}, {16*3584}
s_lshl_b32 {sT1}, {sXG}, 9
s_add_u32 {sT0}, {sT0}, {sT1}
v_add_u32 v45, {sT0}, v45
s_cmp_eq_u32 {sCW}, 0
s_cselect_b32 s60, s26, s28
s_cselect_b32 s61, s27, s29
L_I_pf:
global_load_dword v255, v45, s[60:61]
s_branch L_I_sh
L_I_spare:
s_mov_b64 exec, 1
ds_write_b32 {v(vMISC)}, {v(vTAG)} offset:{M_TAG}
""")
arrive(C_ST)
a(f"""
L_I_sh:
s_cmp_lg_u32 {sCW}, 3
s_cbranch_scc1 L_I_nt
v_not_b32 v65, {v(vTAG)}
v_not_b32 v67, {v(vTAG)}
s_mov_b64 exec, 0xff
global_store_dwordx4 {v(vSA3)}, v[64:67], {sWS} sc1
global_store_dwordx4 {v(vFA5)}, v[64:67], {sWS} sc1
L_I_nt:
""")
dw_loads()
Y = 64
y_loads = [f"global_load_dwordx4 {v(Y,4)}, {v(vYA)}, {sWS} sc1", f"global_load_dwordx4 {v(Y+4,4)}, {v(vYA+1)}, {sWS} sc1"]
def epi(h):
    a(f"""
ds_read_b128 v[24:27], v17 offset:{4096*h}
ds_read_b128 v[28:31], v17 offset:{4096*h+TR_W}
ds_read_b128 v[32:35], v17 offset:{4096*h+2*TR_W}
ds_read_b128 v[36:39], v17 offset:{4096*h+3*TR_W}
s_waitcnt lgkmcnt(2)
v_pk_add_f32 v[24:25], v[24:25], v[28:29]
v_pk_add_f32 v[26:27], v[26:27], v[30:31]
s_waitcnt lgkmcnt(0)
v_pk_add_f32 v[32:33], v[32:33], v[36:37]
v_pk_add_f32 v[34:35], v[34:35], v[38:39]
v_cvt_pk_bf16_f32 v28, v24, v32
v_cvt_pk_bf16_f32 v29, v25, v33
v_cvt_pk_bf16_f32 v30, v26, v34
v_cvt_pk_bf16_f32 v31, v27, v35
v_bfi_b32 v28, {sM2}, {v(PAT)}, v28
v_bfi_b32 v29, {sM2}, {v(PAT+1)}, v29
v_bfi_b32 v30, {sM2}, {v(PAT+2)}, v30
v_bfi_b32 v31, {sM2}, {v(PAT+3)}, v31
global_store_dwordx4 v191, v[28:31], {sWS} offset:{4096*h-4096} sc1
""")
a(f"""
s_cmp_lt_u32 {sRANK}, 28
s_cbranch_scc1 L_I_ep
s_setprio 2
s_mov_b64 exec, 1
""")
poll("p2a", y_loads, ucheck(False, Y))
a("s_branch L_x2\nL_I_ep:")
if not LATE: passB()
a("s_waitcnt lgkmcnt(0)")
stamp(9)
a("s_barrier")
epi(0)
a(f"""
s_lshl_b32 {sT0}, s2, 3
s_add_u32 {sT0}, {sT0}, {sW}
s_cmp_lg_u32 {sT0}, 4
s_cbranch_scc1 L_I_ne
s_mov_b64 exec, 1
global_store_dword v11, {v(vTAG)}, {sWS} sc1
L_I_ne:
s_mov_b64 exec, -1
s_setprio 2
s_barrier
""")
stamp(5)
epi(1)
a("L_x2:\ns_waitcnt vmcnt(2)")
T2 = 116
a(f"v_add_f32 {v(vPV)}, {v(vPV)}, {v(vMD)}\nv_mov_b32 {v(vSW)}, 0")
for i in range(8): a(f"v_pk_add_f32 {v(ZD+2*i,2)}, {v(ZD+2*i,2)}, {v(vMD,2)} op_sel_hi:[1,0] neg_lo:[0,1] neg_hi:[0,1]")
emit(unpack(40, DW, 8))
a(f"s_mov_b32 s60, 0x3f803f80\ns_mov_b64 exec, {sE28}")
for i in range(8): a(f"v_dot2_f32_bf16 {v(vSW)}, {v(DW+8+i)}, s60, {v(vSW)}")
a("s_mov_b64 exec, -1")
for i in range(8): a(f"v_pk_fma_f32 {v(40+2*i,2)}, {v(40+2*i,2)}, {v(vRI,2)}, 1.0 op_sel_hi:[1,0,0]")
uw = unpack(WF, DW+8, 8)
for j, st in enumerate(("row_ror:8 "+DM, "row_ror:4 "+DM, "row_ror:2 "+DM, "row_ror:1 "+DM, "row_bcast:15 row_mask:0xa bank_mask:0xf")):
    a(f"v_add_f32_dpp {v(vSW)}, {v(vSW)}, {v(vSW)} {st}"); emit(uw[2*j:2*j+2])
emit(uw[10:])
for i in range(8): a(f"v_pk_mul_f32 {v(ZD+2*i,2)}, {v(ZD+2*i,2)}, {v(40+2*i,2)}")
a(f"""
v_mov_b32 {v(T2+4)}, 0
v_mov_b32 {v(T2+5)}, 0
v_mov_b32 {v(T2+8)}, 0
v_mov_b32 {v(G+3)}, {sTAG}
v_mov_b32 {v(G+7)}, {sTAG}
v_mov_b32 {v(G+11)}, {sTAG}
""")
a(f"s_mov_b64 exec, {sE56}")
a(f"s_mov_b32 {sSEL0}, {hex(f2u(2.0**95) >> 16)}\ns_mov_b32 {sSEL1}, {hex(f2u(2.0**95))}")
if PACE2: a("s_waitcnt vmcnt(0)")
stamp(6)
emit(y_loads)
a("s_waitcnt vmcnt(0)")
ucheck(False, Y)()
a("s_cbranch_vccnz L_p2_retry\nL_p2_ok:")
def tail():
    a("L_p2_retry:\ns_wqm_b64 exec, vcc")
    poll("p2", y_loads, ucheck(True, Y), restore=sE56)
    a("s_branch L_p2_ok")
TAILS.append(tail)
for j in range(2):
    for i in range(4): a(f"ds_write_b32 {v(vYW)}, {v(Y+4*j+i)} offset:{i*XT_ROW+112*j}")
arrive(C_YT)
spin("syt", C_YT, 4, 72, [f"ds_read_b128 {v(Y,4)}, {v(vXW)}", f"ds_read_b128 {v(Y+4,4)}, {v(vXW)} offset:448"])
stamp(7)
D2 = 24
a(f"s_mov_b64 exec, {sE28}")
emit(unpack_add(D2, Y, 8, lambda i: ZD+i))
sums(D2, T2, WF)
S1, S2, S3 = T2+4, T2+5, T2+8
for r in (S1, S2, S3): a(f"v_add_f32_dpp {v(r)}, {v(r)}, {v(r)} row_bcast:15 row_mask:0xa bank_mask:0xf")
A2 = 52; B2 = 54
a(f"""
v_mul_f32 {v(S1)}, {INV}, {v(S1)}
v_mul_f32 {v(S2)}, {INV}, {v(S2)}
v_fma_f32 {v(S2)}, -{v(S1)}, {v(S1)}, {v(S2)}
v_fma_f32 {v(S3)}, -{v(S1)}, {v(vSW)}, {v(S3)}
v_max_f32 {v(S2)}, 0, {v(S2)}
v_add_f32 {v(S2)}, {EPS}, {v(S2)}
v_rsq_f32 {v(A2)}, {v(S2)}
s_mov_b32 s60, 0xfffff800
v_mul_f32 {v(S3)}, {v(S3)}, {v(A2)}
v_ashrrev_i32 {v(T2)}, 31, {v(S3)}
v_or_b32 {v(T2)}, 0x80000000, {v(T2)}
v_xor_b32 {v(T2)}, {v(T2)}, {v(S3)}
v_and_or_b32 {v(T2)}, {v(T2)}, s60, {v(vKL)}
v_mul_f32 {v(A2+1)}, {v(S1)}, {v(A2)}
v_readlane_b32 {sT0}, {v(T2)}, 31
v_readlane_b32 {sT1}, {v(T2)}, 63
v_mov_b32 {v(T2)}, {v(A2)}
s_max_u32 {sKEY}, {sT0}, {sT1}
s_cselect_b32 {sT2}, -1, 0
s_max_u32 {sKEY}, {sKEY}, 1
v_mov_b32 {v(SL)}, {sKEY}
s_mov_b64 exec, 1
ds_write_b32 {v(vCF)}, {v(SL)} offset:{M_KEY}
s_mov_b64 exec, -1
v_mov_b32 {v(T2+1)}, {v(A2+1)}
v_mov_b32 {v(SL+2)}, {sKEY}
v_permlane16_swap_b32 {v(T2)}, {v(A2)}
v_permlane16_swap_b32 {v(T2+1)}, {v(A2+1)}
s_mov_b32 {sCNT}, 0
L_key:
ds_read_b128 v[56:59], {v(vMISC)} offset:{M_KEY}
s_add_u32 {sCNT}, {sCNT}, 1
s_cmp_gt_u32 {sCNT}, {SPIN*4}
s_waitcnt lgkmcnt(0)
v_min3_u32 v60, v56, v57, v58
v_max3_u32 v61, v56, v57, v58
v_min_u32 v60, v60, v59
v_max_u32 v61, v61, v59
v_cmp_eq_u32 vcc, 0, v60
s_cbranch_scc1 L_key_x
s_cbranch_vccnz L_key
L_key_x:
v_cmp_ne_u32 vcc, v61, {v(SL)}
s_mov_b32 {sT3}, 0
s_cbranch_vccnz L_notbest
s_mov_b64 exec, 0xff
global_store_dwordx4 {v(vSA3)}, {v(SL,4)}, {sWS} sc1
""")
if PACE3 == 0: a(f"s_mov_b64 exec, 1\nds_add_u32 {v(vMISC)}, {v(vONE)} offset:{C_PUB}")
a(f"""
s_mov_b32 exec_lo, {sT2}
s_not_b32 exec_hi, {sT2}
""")
gpos = [0, 1, 2, 4, 5, 6, 8, 9]
for i in range(8):
    a(f"v_pk_fma_f32 {v(72+2*i,2)}, {v(D2+2*i,2)}, {v(A2,2)}, {v(A2,2)} op_sel:[0,0,1] op_sel_hi:[1,0,1] neg_lo:[0,0,1] neg_hi:[0,0,1]")
for i in range(8):
    a(f"v_cvt_pk_bf16_f32 {v(G+gpos[i])}, {v(72+2*i)}, {v(73+2*i)}")
a(f"""
v_fma_f32 {v(S2)}, {v(S2)}, {v(A2)}, 1.0
v_add_f32 {v(S1)}, {v(S1)}, {v(vPV)}
s_mov_b32 s60, 0x10000
s_mov_b32 s61, 0x10000
v_cndmask_b32 {v(G+10)}, {v(S2)}, {v(S3)}, s[60:61]
s_mov_b32 s60, 0x20000
s_mov_b32 s61, 0x20000
v_cndmask_b32 {v(G+10)}, {v(G+10)}, {v(S1)}, s[60:61]
global_store_dwordx4 {v(vRA)}, {v(G,4)}, {sWS} sc1
global_store_dwordx4 {v(vRA)}, {v(G+4,4)}, {sWS} offset:512 sc1
global_store_dwordx4 {v(vRA)}, {v(G+8,4)}, {sWS} offset:1024 sc1
s_mov_b64 exec, -1
s_mov_b32 {sT3}, 1
L_notbest:
""")
stamp(8)
a(f"""
v_add_f32 {v(B2)}, 1.0, {v(A2)}
v_sub_f32 {v(B2+1)}, {v(vPV)}, {v(A2+1)}
""")
for i in range(8):
    a(f"v_pk_fma_f32 {v(D2+2*i,2)}, {v(D2+2*i,2)}, {v(B2,2)}, {v(B2,2)} op_sel:[0,0,1] op_sel_hi:[1,0,1]")
for i in range(8):
    a(f"v_cvt_pk_bf16_f32 {v(Y+i)}, {v(D2+2*i)}, {v(D2+2*i+1)}")
a(f"""
s_mov_b64 exec, {sE28}
global_store_dwordx4 {v(vOA)}, {v(Y,4)}, {sOUT} sc1
global_store_dwordx4 {v(vOA)}, {v(Y+4,4)}, {sOUT} offset:448 sc1
s_cmp_eq_u32 {sT3}, 0
s_cbranch_scc1 L_fin
""")
if PACE3 == 1: a("s_waitcnt vmcnt(5)")
if PACE3: a(f"s_mov_b64 exec, 1\nds_add_u32 {v(vMISC)}, {v(vONE)} offset:{C_PUB}")
a(f"""
s_mov_b64 exec, 0xff
s_waitcnt vmcnt(0)
global_store_dwordx4 {v(vFA5)}, {v(SL,4)}, {sWS} sc1
s_branch L_fin
""")

vTAB = 224
a("L_C:")
stamp0()
a(f"""
v_mov_b32 v8, 0
v_mov_b32 v9, 0
v_mov_b32 v10, 0
s_mul_i32 {sT0}, {sW}, {U_CH}
s_add_u32 {sT0}, {sT0}, {L_U-U_CH}
s_cmp_eq_u32 {sW}, 0
s_cselect_b32 {sT0}, 0, {sT0}
v_add_u32 v24, {sT0}, {v(vL16)}
s_mov_b64 exec, 0xffffff
ds_write_b128 v24, v[8:11]
s_mov_b64 exec, -1
v_mov_b32 {v(vONE)}, 1
s_mul_i32 {sT0}, {sW}, {TR_W}
s_add_u32 m0, {sT0}, {L_TR}
v_and_b32 v20, 31, {v(vLANE)}
v_lshrrev_b32 v21, 5, {v(vLANE)}
v_mul_u32_u24 {v(vRD)}, {TR_ROW}, v20
v_lshl_add_u32 {v(vRD)}, v21, 4, {v(vRD)}
v_add_u32 {v(vRD)}, m0, {v(vRD)}
v_add_u32 v23, m0, {v(vL16)}
v_mov_b32 v22, 0x3f80
s_mov_b32 s92, {hex(f2u(1.4426950408889634))}
s_mov_b32 s93, {hex(f2u(0.15915494309189535))}
ds_write_addtid_b32 v22
s_waitcnt lgkmcnt(0)
s_barrier
""")
ld_load()
vKW, vA, vB = 12, 13, 17
GA = 144
a(f"""
s_cmp_ge_u32 {sRANK}, 28
s_cbranch_scc1 L_C_spare
s_lshr_b32 {sT1}, {sW}, 1
s_and_b32 {sT2}, {sW}, 1
s_mul_i32 {sT0}, {sT1}, {T_CH}
s_lshl_b32 {sT3}, {sT2}, 2
s_add_u32 {sT0}, {sT0}, {sT3}
v_lshl_add_u32 {v(vTW)}, v20, 3, {sT0}
v_lshl_add_u32 {v(vTW)}, v21, 10, {v(vTW)}
s_lshl_b32 {sT0}, {sT1}, 2
v_mov_b32 v20, {sT0}
v_bfe_u32 v21, {v(vLANE)}, 2, 2
v_mul_u32_u24 {v(vA)}, {KC_ROW}, v21
v_and_b32 v21, 3, {v(vLANE)}
v_lshl_add_u32 {v(vA)}, v21, 6, {v(vA)}
v_and_b32 v22, 0x30, {v(vLANE)}
v_add3_u32 {v(vA)}, {v(vA)}, v22, m0
s_mul_i32 {sT3}, {sT1}, {U_CH}
s_lshl_b32 {sT2}, {sT2}, 6
s_add_u32 {sT3}, {sT3}, {sT2}
s_add_u32 {sT3}, {sT3}, {L_U + 128 - 120}
v_and_b32 v21, 15, {v(vLANE)}
v_lshlrev_b32 {v(vB)}, 3, v21
v_add3_u32 {v(vB)}, {v(vB)}, v22, {sT3}
v_add_u32 v15, {4*TR_W}, v23
s_waitcnt lgkmcnt(0)
""")
kgen_dt()
a("s_waitcnt vmcnt(0)")
stamp(1)
for i in range(6): a(f"v_lshlrev_b32 {v(vPAR+i)}, 16, {v(vPAR2+i)}")
rows = kgen_rows(0, 32)
emit(rows[:cut(rows, TROW)])
a(f"global_load_dwordx4 v[224:227], v14, {sPC}\nglobal_load_dwordx4 v[228:231], v14, {sPC} offset:1024")
emit(rows[cut(rows, TROW):])
emit(kgen_reads(0))
fill = ["s_waitcnt vmcnt(0)"] + [(f"v_lshrrev_b32 {v(GA+k)}, 16, {v(vTAB+k//2)}" if k % 2 else f"v_and_b32 {v(GA+k)}, 0xffff, {v(vTAB+k//2)}") for k in range(11)]
fill.append(f"v_lshrrev_b32 {v(vKW)}, 16, {v(vTAB+7)}")
fill.append(f"v_add_u32 {v(vRD)}, {4*TR_W}, {v(vRD)}")
if NX:
    a(f"s_add_u32 m0, m0, {4*TR_W-M0X}")
    for i in range(6): a(f"v_and_b32 {v(vPAR2+i)}, 0xffff0000, {v(vPAR2+i)}")
    emit(two_direct(vPAR2, 8.0, z8, 8.0*(32-NX), z256) + cmul(Lb, La, z256))
    a("s_waitcnt lgkmcnt(0)")
    cur, nxt = Lb, La
    for j in range(32-NX, 32):
        k = j-(32-NX)
        if k < 8: a(kmfma(k, k == 0))
        emit(put(22+j, cur, M0X))
        if j < 31: emit(cmul(nxt, cur, z8)); cur, nxt = nxt, cur
    for k in range(NX, 8): a(kmfma(k, False))
    a(fill.pop())
else:
    for s in range(8):
        a(f"s_waitcnt lgkmcnt({14-2*s})")
        a(kmfma(s, s == 0))
        emit(fill[2*s:2*s+2])
    emit(fill[16:]); fill = []
a("ds_write_b128 v23, v[8:11]")
stamp(10)
a("s_barrier")
emit(kgen_reads(0))
fi = 0
for s in range(8):
    a(f"s_waitcnt lgkmcnt({14-2*s})")
    a(kmfma(s, False))
    if s < 7: emit(fill[fi:fi+4]); fi += 4
emit(fill[fi:])
for r in range(11):
    a(f"ds_write_b32 {v(vTW)}, {v(KACC+r)} offset:{L_T+(8*(r>>2)+(r&3))*256}")
a(f"s_mov_b64 exec, 1\nds_add_u32 v20, {v(vONE)} offset:{C_T}\ns_mov_b64 exec, -1")
stamp(2)
GV = 24
spin("st", C_T, 2, 54, [f"ds_read_b64 {v(GV+2*k,2)}, {v(GA+k)}" for k in range(11)], base=20)
for k in range(11): a(f"v_add_f32 {v(GV+2*k)}, {v(GV+2*k)}, {v(GV+2*k+1)}")
gran(56, GV, list(range(11)), vKW, 0)
ACC, BF, AF, BK = 24, 56, 88, 152
def Areg(aa, g): return 216 + 4*(aa-4) if (g == 3 and aa >= 4) else AF + 16*g + 4*(aa % 4)
def Breg(b, g): return BK + 16*g + 4*b if b < 4 else BF + 4*(b-4) + 16*(g % 2)
def Aload(aa, g): return f"ds_read_b128 {v(Areg(aa,g),4)}, {v(vA)} offset:{(4*aa-g+3)*KC_ROW}"
for aa in range(4): a(Aload(aa, 0))
stamp(3)
mf = []
for g2 in range(3):
    for b in range(8):
        for aa in range(min(4, 8-b)): mf.append((aa+b, aa, b, g2))
for nu in range(8):
    for aa in range(min(nu, 3), -1, -1): mf.append((nu, aa, nu-aa, 3))
iM = len(mf) - 8 + 1
for nu in range(4, 8):
    for aa in range(4, nu+1):
        for g2 in range(4): mf.append((nu, aa, nu-aa, 4+g2))
first_use = {}; last_use = {}; last_acc = {}
for i, (nu, aa, b, st) in enumerate(mf):
    for k in (('A', aa, st % 4), ('B', b, st % 4)):
        first_use.setdefault(k, i); last_use[k] = i
    last_acc[nu] = i
ops = []
for g2 in range(4):
    for b in range(8):
        rdy = last_use[('B', b, g2-2)] if b >= 4 and g2 >= 2 else -1
        for h in range(2): ops.append((first_use[('B', b, g2)], rdy, ('B', b, g2), f"ds_read_b64 {v(Breg(b,g2)+2*h,2)}, {v(vB)} offset:{512*b+128*g2+8*h}"))
    for aa in range(8):
        if g2 or aa >= 4: ops.append((first_use[('A', aa, g2)], iM if aa >= 4 else -1, ('A', aa, g2), Aload(aa, g2)))
for nu in range(8): ops.append((last_acc[nu]+8 if nu < 4 else 1000+nu, last_acc[nu]+8, ('W', nu), f"ds_write_b128 v15, {v(ACC+4*nu,4)} offset:{1024*nu}"))
ops.sort(key=lambda o: o[0])
issued = []; done = 0
a(f"L_u_again:\nds_read_b32 v22, {v(vMISC)} offset:{C_U}")
while ops[0][0] <= 8:
    o = ops.pop(0); a(o[3]); issued.append((o[2], -1))
a(f"s_waitcnt lgkmcnt({len(issued)-2})\nv_cmp_gt_u32 vcc, 4, v22\ns_cbranch_vccnz L_u_retry")
done = 2
def tail():
    a("L_u_retry:")
    spin("usp", C_U, 4, 22)
    a("s_cbranch_scc0 L_u_again\ns_branch L_end")
TAILS.append(tail)
stamp(4)
seen_acc = set()
for i, (nu, aa, b, st) in enumerate(mf):
    keys = (('A', aa, st % 4), ('B', b, st % 4))
    assert not any(o[2] in keys for o in ops), (i, keys)
    need_ = max([j+1 for j, (k, _) in enumerate(issued) if k in keys] + [1])
    if need_ > done:
        tgt = need_
        while tgt < len(issued) and issued[tgt][1] <= i - 7: tgt += 1
        a(f"s_waitcnt lgkmcnt({min(15, len(issued)-tgt)})"); done = len(issued) - min(15, len(issued)-tgt)
    a(f"v_mfma_f32_16x16x32_bf16 {v(ACC+4*nu,4)}, {v(Areg(aa,st%4),4)}, {v(Breg(b,st%4),4)}, {v(ACC+4*nu,4) if nu in seen_acc else '0'}")
    seen_acc.add(nu)
    if i == iM:
        assert not any(o[2][0] == 'W' and o[2][1] < 4 for o in ops)
        need_ = max(j+1 for j, (k, _) in enumerate(issued) if k[0] == 'W')
        if need_ > done: a(f"s_waitcnt lgkmcnt({len(issued)-need_})"); done = need_
        a("s_barrier")
    n_iss = 0
    while n_iss < 2:
        pick = next((j for j, o in enumerate(ops) if o[1] <= i and (n_iss == 0 or o[0] - i <= 6 + j)), None)
        if pick is None: break
        o = ops.pop(pick); a(o[3]); issued.append((o[2], i)); n_iss += 1
for o in ops: a(o[3])
a("s_waitcnt lgkmcnt(0)")
stamp(9)
a("s_barrier\ns_branch L_fin")
SG, SD, XA, FA = 24, 136, 192, 248
a("L_C_spare:\ns_waitcnt vmcnt(0) lgkmcnt(0)")
a(f"""
s_cmp_eq_u32 {sXG}, 7
s_cbranch_scc1 L_fin
s_lshl_b32 {sF}, {sXG}, 2
s_add_u32 {sF}, {sF}, {sRANK}
s_sub_u32 {sF}, {sF}, 28
v_lshrrev_b32 v20, 3, v0
v_and_b32 v21, 7, v0
v_mul_u32_u24 v22, 3584, v20
v_lshl_add_u32 v22, v21, 4, v22
s_lshl_b32 {sT0}, {sF}, 7
v_add_u32 v22, {sT0}, v22
s_mul_i32 {sT0}, {sF}, {64*896}
v_lshl_add_u32 v23, v0, 4, {sT0}
""")
spin("sf0", C_ST, 4, 2, [f"ds_read_b32 {v(vTAG)}, {v(vMISC)} offset:{M_TAG}"])
a(f"v_readfirstlane_b32 {sTAG}, {v(vTAG)}")
wl = []
for i in range(14):
    wl.append(f"global_load_dwordx4 {v(SD+4*i,4)}, v23, {sWD}" + ("\ns_add_u32 s30, s30, 4096\ns_addc_u32 s31, s31, 0" if i < 13 else ""))
for i in range(14):
    wl.append(f"global_load_dwordx4 {v(SG+8*i,4)}, v22, {sWG}" + (f"\ns_add_u32 s26, s26, {32*3584}\ns_addc_u32 s27, s27, 0" if i < 13 else ""))
    wl.append(f"global_load_dwordx4 {v(SG+8*i+4,4)}, v22, {sWU}" + (f"\ns_add_u32 s28, s28, {32*3584}\ns_addc_u32 s29, s29, 0" if i < 13 else ""))
WIN = opt("win", 15)
emit(wl[:WIN]); wi = [WIN]
def wnext(k):
    a(f"s_waitcnt vmcnt({wi[0]-k-1})")
def wmore():
    if wi[0] < 42: a(wl[wi[0]]); wi[0] += 1
stamp(1)
a(f"""
v_mul_u32_u24 v2, {WG_ROW}, v20
v_lshl_add_u32 v2, v21, 4, v2
v_add_u32 v3, {7*32*WG_ROW}, v2
v_lshrrev_b32 v21, 4, {v(vLANE)}
v_lshlrev_b32 v20, 3, v21
v_bfe_u32 v4, {v(vLANE)}, 2, 2
v_add_u32 v20, v20, v4
v_and_b32 v5, 3, {v(vLANE)}
v_lshlrev_b32 v5, 3, v5
s_lshl_b32 {sT0}, {sW}, 5
v_mul_u32_u24 v6, {WG_ROW}, v20
v_add3_u32 v6, v6, v5, {sT0}
v_add_u32 v7, {7*32*WG_ROW}, v6
s_mul_i32 {sT0}, {sW}, 224
v_mul_u32_u24 v8, {WD_ROW}, v20
v_add3_u32 v8, v8, v5, {sT0}
""")
a(f"s_mov_b32 {sT0}, {(2**32+55)//56}")
for i in range(14):
    a(f"v_add_u32 v9, {256*i}, v0")
    a(f"v_mul_hi_u32 v10, v9, {sT0}")
    a(f"v_add_lshl_u32 v9, v9, v10, 4")
    wnext(i)
    a(f"ds_write_b128 v9, {v(SD+4*i,4)} offset:{L_ST}")
    wmore()
arrive(C_SG)
def gu_write(i):
    base, off = (3, L_ST+i*32*WG_ROW) if i < 7 else (2, L_ST+(i-7)*32*WG_ROW)
    for m_ in range(2):
        wnext(14+2*i+m_)
        a(f"ds_write_b128 {v(base)}, {v(SG+8*i+4*m_,4)} offset:{off+128*m_}")
        wmore()
def gu_read(s):
    base, off = (7, L_ST+s*32*WG_ROW) if s < 7 else (6, L_ST+(s-7)*32*WG_ROW)
    for m_ in range(2):
        for h in range(2):
            a(f"ds_read_b64_tr_b16 {v(SG+8*s+4*m_+2*h,2)}, {v(base)} offset:{off+4*h*WG_ROW+128*m_}")
for i in range(2): gu_write(i)
spin("sf1", C_SG, 4, 9)
for T in range(7):
    for s in range(2):
        for h in range(2):
            a(f"ds_read_b64_tr_b16 {v(SD+8*T+4*s+2*h,2)}, v8 offset:{L_ST+(32*s+4*h)*WD_ROW+32*T}")
for i in range(2, 7): gu_write(i)
arrive(C_SG)
spin("sf2", C_SG, 8, 9)
stamp(2)
for s in range(7): gu_read(s)
for i in range(7, 14): gu_write(i)
arrive(C_SG)
spin("sf3", C_SG, 12, 9)
stamp(3)
for s in range(7, 14): gu_read(s)
a(f"""
v_lshlrev_b32 v21, 4, v21
v_add_u32 v20, {M_XS}, v21
v_add_u32 v2, {M_GU}, v21
v_mov_b32 v3, {M_ZERO}
""")
for T in range(4):
    a(f"v_cmp_eq_u32 vcc, {T}, v4")
    a(f"v_cndmask_b32 {v(12+T)}, v3, v2, vcc")
a(f"""
s_lshl_b32 {sT0}, {sW}, 5
s_add_u32 {sT0}, {sT0}, {M_GU}
v_lshl_add_u32 v22, {v(vLANE)}, 1, {sT0}
s_lshl_b32 {sT0}, {sF}, 12
s_mul_i32 {sT1}, {sW}, 896
s_add_u32 {sT0}, {sT0}, {sT1}
s_add_u32 {sT0}, {sT0}, {WS_P4}
v_lshl_add_u32 v23, {v(vLANE)}, 3, {sT0}
""")
if opt("p4touch", 1):
    a(f"""
v_add_u32 v9, {sT0}, {v(vL16)}
v_not_b32 {v(FA+1)}, {v(vTAG)}
v_not_b32 {v(FA+3)}, {v(vTAG)}
s_mov_b64 exec, {sE56}
global_store_dwordx4 v9, {v(FA,4)}, {sWS} sc1
s_mov_b64 exec, -1
""")
a("s_waitcnt vmcnt(0) lgkmcnt(0)")
stamp(6)
a(f"""
s_cmp_lg_u32 {sW}, 0
s_cbranch_scc1 L_ffn_w
s_and_b32 {sT0}, {sRANK}, 3
s_lshl_b32 {sT0}, {sT0}, 13
v_lshl_add_u32 v2, {v(vLANE)}, 7, {sT0}
v_xor_b32 v3, 0x2000, v2
v_xor_b32 v4, 0x4000, v2
v_xor_b32 v5, 0x6000, v2
s_add_u32 s60, s36, {WS_S3}
s_addc_u32 s61, s37, 0
v_add_u32 v7, {M_XS}, {v(vL16)}
""")
spin("spub", C_PUB, 1, 9)
stamp(8)
poll("p3", [f"global_load_dwordx2 {v(XA+2*i,2)}, {v(2+i)}, s[60:61] sc1" for i in range(4)], tagcheck([XA+1, XA+3, XA+5, XA+7], 9))
stamp(4)
if STAMPS: a(f"s_mov_b32 s53, {sCNT}")
a(f"v_max3_u32 v9, {v(XA)}, {v(XA+2)}, {v(XA+4)}\nv_max_u32 v9, v9, {v(XA+6)}")
for st in ("row_shr:1", "row_shr:2", "row_shr:4", "row_shr:8"): a(f"v_max_u32_dpp v9, v9, v9 {st} {DM}")
a(f"""
v_readlane_b32 {sT0}, v9, 15
v_readlane_b32 {sT1}, v9, 31
v_readlane_b32 {sT2}, v9, 47
v_readlane_b32 {sT3}, v9, 63
s_max_u32 {sT0}, {sT0}, {sT1}
s_max_u32 {sT2}, {sT2}, {sT3}
s_max_u32 {sIDX}, {sT0}, {sT2}
s_andn2_b32 {sIDX}, 0x7ff, {sIDX}
s_lshr_b32 {sT0}, {sIDX}, 3
s_lshl_b32 {sT1}, {sT0}, 11
s_add_u32 {sT1}, {sT1}, {WS_R3}
v_add_u32 v6, {sT1}, {v(vL16)}
s_mov_b64 exec, 0xfffffff
""")
poll("p3r", [f"global_load_dwordx4 {v(XA+4*i,4)}, v6, {sWS} offset:{512*i} sc1" for i in range(3)], tagcheck([XA+3, XA+7, XA+11], 9), restore="0xfffffff")
if STAMPS: a(f"s_lshl_b32 s53, s53, 8\ns_add_u32 s53, s53, {sCNT}")
a(f"""
v_mov_b32 {v(XA+3)}, {v(XA+4)}
v_mov_b32 {v(XA+7)}, {v(XA+6)}
v_mov_b32 {v(XA+6)}, {v(XA+5)}
ds_write_b128 v7, {v(XA,4)}
ds_write_b128 v7, {v(XA+6,4)} offset:448
s_mov_b64 exec, -1
v_readlane_b32 s46, {v(XA+10)}, 16
v_readlane_b32 s47, {v(XA+10)}, 17
v_readlane_b32 s48, {v(XA+10)}, 18
L_ffn_w:
s_waitcnt lgkmcnt(0)
s_barrier
""")
stamp(9)
for s in range(14): a(f"ds_read_b128 {v(XA+4*s,4)}, v20 offset:{64*s}")
for s in range(14):
    if s % 2 == 0: a(f"s_waitcnt lgkmcnt({12-s})")
    for m_ in range(2):
        a(f"v_mfma_f32_16x16x32_bf16 {v(FA+4*m_,4)}, {v(XA+4*s,4)}, {v(SG+8*s+4*m_,4)}, {'0' if s == 0 else v(FA+4*m_,4)}")
a(f"""
v_mul_f32 v2, {hex(f2u(-1.4426950408889634))}, {v(FA)}
v_exp_f32 v2, v2
v_mul_f32 v3, {v(FA)}, {v(FA+4)}
v_add_f32 v2, 1.0, v2
v_rcp_f32 v2, v2
s_mov_b64 exec, 0xffff
v_mul_f32 v2, v2, v3
v_cvt_pk_bf16_f32 v2, v2, v2
ds_write_b16 v22, v2
s_mov_b64 exec, -1
s_waitcnt lgkmcnt(0)
s_barrier
""")
for T in range(4):
    for s in range(2): a(f"ds_read_b128 {v(XA+8*T+4*s,4)}, {v(12+T)} offset:{64*s}")
for T in range(4):
    a(f"s_waitcnt lgkmcnt({6-2*T})")
    for s in range(2):
        for hi in range(2):
            if 4*hi+T < 7:
                a(f"v_mfma_f32_16x16x32_bf16 {v(FA+4*hi,4)}, {v(XA+8*T+4*s,4)}, {v(SD+8*(4*hi+T)+4*s,4)}, {'0' if T+s == 0 else v(FA+4*hi,4)}")
a(f"""
s_cmp_lg_u32 {sW}, 0
s_mov_b32 exec_hi, 0xffff
v_mov_b32 {v(FA+5)}, {sTAG}
global_store_dwordx2 v23, {v(FA+4,2)}, {sWS} offset:512 sc1
s_mov_b64 exec, -1
v_mov_b32 {v(FA+1)}, {sTAG}
global_store_dwordx2 v23, {v(FA,2)}, {sWS} sc1
s_cbranch_scc1 L_fin
""")
stamp(10)
a(f"""
v_lshrrev_b32 v20, 3, {v(vLANE)}
v_and_b32 v21, 7, {v(vLANE)}
s_lshl_b32 {sT0}, {sF}, 7
s_add_u32 {sT0}, {sT0}, {WS_P4}
v_lshl_add_u32 v2, v20, 12, {sT0}
v_lshl_add_u32 v2, v21, 4, v2
v_add_u32 v3, 0x8000, v2
v_add_u32 v4, 0x10000, v2
v_add_u32 v5, 0x18000, v2
s_lshr_b32 {sT0}, {sIDX}, 3
s_lshl_b32 {sT0}, {sT0}, 7
s_add_u32 {sT0}, {sT0}, {WS_F5}
s_mov_b32 exec_lo, 0
v_mov_b32 v5, {sT0}
s_mov_b32 exec_lo, -1
s_lshl_b32 {sT0}, {sF}, 5
s_add_u32 {sT1}, {sT0}, {M_XS}
v_lshl_add_u32 v6, v21, 2, {sT1}
ds_read_b32 v46, v6
s_mul_i32 {sT1}, {sIDX}, 896
s_add_u32 {sT0}, {sT0}, {sT1}
v_lshl_add_u32 v27, v21, 2, {sT0}
v_mov_b32 v44, {hex(f2u(-1.4426950408889634))}
v_mul_f32 v44, s46, v44
v_exp_f32 v44, v44
v_mov_b32 v50, s47
v_add_f32 v44, 1.0, v44
v_rcp_f32 v44, v44
s_waitcnt lgkmcnt(0)
v_lshlrev_b32 v48, 16, v46
v_and_b32 v49, 0xffff0000, v46
v_fma_f32 v48, v48, s48, v50
v_fma_f32 v49, v49, s48, v50
""")
if PACE4: a("s_waitcnt vmcnt(0)")
stamp(5)
poll("p4", [f"global_load_dwordx4 {v(28+4*i,4)}, {v(2+i)}, {sWS} sc1" for i in range(4)], tagcheck([29+2*i for i in range(8)], 9))
if STAMPS: a(f"s_lshl_b32 s53, s53, 8\ns_add_u32 s53, s53, {sCNT}")
a(f"""
v_add_f32 v28, v28, v32
v_add_f32 v30, v30, v34
s_mov_b32 exec_hi, 0
v_add_f32 v36, v36, v40
v_add_f32 v38, v38, v42
s_mov_b32 exec_hi, -1
v_add_f32 v28, v28, v36
v_add_f32 v30, v30, v38
v_permlane32_swap_b32 v28, v30
v_add_f32 v28, v28, v30
v_add_f32_dpp v28, v28, v28 row_ror:8 {DM}
v_mov_b32 v29, v28
v_permlane16_swap_b32 v28, v29
v_add_f32 v28, v28, v29
v_mov_b32 v29, v28
v_permlane32_swap_b32 v28, v29
v_pk_fma_f32 v[28:29], v[28:29], v[44:45], v[48:49] op_sel_hi:[1,0,1]
v_cvt_pk_bf16_f32 v28, v28, v29
s_mov_b64 exec, 0xff
global_store_dword v27, v28, {sOUT} sc1
""")
stamp(11)
a("L_fin:")
if STAMPS:
    a(f"""
s_waitcnt vmcnt(0)
""")
    stamp(12)
    a(f"""
s_lshl_b32 {sT0}, s2, 3
s_add_u32 {sT0}, {sT0}, {sW}
s_lshl_b32 {sT0}, {sT0}, 7
s_add_u32 {sT0}, {sT0}, {WS_DBG}
s_mov_b64 exec, 1
v_mov_b32 v20, {sT0}
""")
    for i in range(26):
        a(f"v_mov_b32 v21, s{62+i}\nglobal_store_dword v20, v21, {sWS} offset:{4*i}")
    a(f"v_mov_b32 v21, s53\nglobal_store_dword v20, v21, {sWS} offset:104")
a("L_end:\ns_endpgm")
for t in TAILS: t()

n = a.fix_hazards()
check_waitcnt(a)
na = align_pass(a) if "--noalign" not in sys.argv else 0

def rbf(l):
    u = f2u(float(l)); u = (u + 0x7fff + ((u >> 16) & 1)) & 0xffff0000
    return int(struct.unpack("<f", struct.pack("<I", u))[0])
def taddr(l, ch):
    if l < 0: return M_ZERO
    lr = rbf(l); b, col, off = lr >> 8, (lr >> 3) & 31, lr & 7
    row = [off, 8+off//2, 12+off//4, 14+off//4, 16, 17, 18, 20, 21][b]
    return L_T + ch*T_CH + row*256 + col*8
tab = []
for cw in range(4):
    ch, hw = cw >> 1, cw & 1
    rows_ = []
    for lane in range(64):
        n4 = lane >> 2; kq = lane & 3
        N = (n4 & ~3) | ((n4 & 1) << 1) | ((n4 >> 1) & 1)
        MA = 8*N + 7 - 4*hw - kq; MB = MA + 128
        e = [taddr(8*MA-3+k, ch) for k in range(11)]
        eb = [taddr(8*MB-3+k, ch) for k in range(11)]
        assert len(set(eb[1:7])) == 1 and len(set(eb[8:11])) == 1
        e += [eb[0], eb[1], eb[7], eb[8]]
        e.append(L_TR + cw*TR_W + (N+3)*KC_ROW + kq*16)
        assert max(e) < 65536
        rows_.append(e)
    tab += [e[:8] for e in rows_] + [e[8:] for e in rows_]
table = ".p2align 7\n.type L_table,@object\nL_table:\n" + "".join(".short " + ", ".join(str(x) for x in e) + "\n" for e in tab) + ".size L_table, 8192\n"

ref = open("cdna_kernels/%s.s.ref" % NAME).read()
head = "".join(l + "\n" for l in ref.splitlines() if l.startswith(";") and "@launch" not in l)
out = head + f"; @launch grid=(256,1,1) block=(512,1,1) lds={LDS_SIZE}\n" + f""".amdgcn_target "amdgcn-amd-amdhsa--gfx950"
.text
.globl {NAME}_kernel
.p2align 8
.type {NAME}_kernel,@function
{NAME}_kernel:
""" + a.text() + table + f""".section .rodata,"a"
.p2align 6
.amdhsa_kernel {NAME}_kernel
  .amdhsa_next_free_vgpr 256
  .amdhsa_next_free_sgpr 96
  .amdhsa_accum_offset 256
  .amdhsa_group_segment_fixed_size 0
  .amdhsa_kernarg_size 136
  .amdhsa_user_sgpr_count 2
  .amdhsa_user_sgpr_kernarg_segment_ptr 1
  .amdhsa_system_sgpr_workgroup_id_x 1
  .amdhsa_float_denorm_mode_32 3
.end_amdhsa_kernel
"""
dst = [x for x in sys.argv[1:] if not x.startswith("--")]
dst = dst[0] if dst else "cdna_kernels/%s.s" % NAME
open(dst, "w").write(out)
print("wrote", dst, "instrs", sum(1 for x in a.ins if x.op), "nops added", n, "align fixes", na, "lds", LDS_SIZE)
```

```python
import sys, struct
from asmlib import Asm, check_waitcnt
import numpy as np

NAME = "sequential_preLN__ssm_conv_s4__moe_arch_mod__prompt"
STAMPS = "--stamps" in sys.argv
DIAG = [x for x in sys.argv if x.startswith("--diag=")]
DIAG = [int(t) for t in DIAG[0][7:].split(",")] if DIAG else None
if DIAG: STAMPS = True

WS_E   = 0x0
WS_S3  = 0x100000
WS_F5  = 0x110000
WS_P4  = 0x120000
WS_R3  = 0x200000
WS_U1  = 0x400000
WS_Y2  = 0x600000
WS_DBG = 0x800000
TR_ROW = 272; TR_W = 54*TR_ROW
L_T  = 4*TR_W
T_CH = 24*256
L_KC = L_T + 2*T_CH
KC_ROW = 288; KC_W = 35*KC_ROW
L_U  = L_KC + 4*KC_W
U_CH = 4288
L_XT = 121856; XT_ROW = 960; YT_ROW = 912
L_MISC = L_XT + 8*XT_ROW + 64
M_FLAG = 0; M_KEY = 32; M_GU = 64; M_ZERO = 192; M_XS = 384; M_HS = 384+1024
LDS_SIZE = L_MISC + M_HS + 1024
WG_ROW = 272; WD_ROW = 912
assert 448*WG_ROW <= L_XT and L_U + 2*U_CH <= L_XT
SPIN = 0x40000

def f2u(x): return struct.unpack("<I", struct.pack("<f", x))[0]
def v(i, n=1): return f"v{i}" if n == 1 else f"v[{i}:{i+n-1}]"

a = Asm()
sX, sAR, sAI, sBR, sBI, sCR, sCI, sLD = [f"s[{4+2*i}:{5+2*i}]" for i in range(8)]
sDK, sBX, sWR, sWG, sWU, sWD, sOUT, sDBG = [f"s[{20+2*i}:{21+2*i}]" for i in range(8)]
sWS = "s[36:37]"
sXG, sRANK, sQ, sP, sW, sTAG = "s38", "s39", "s40", "s41", "s42", "s43"
sPC = "s[44:45]"; sE56 = "s[46:47]"
sCNT = "s54"; sT0, sT1, sT2, sT3 = "s55", "s56", "s57", "s58"
sKEY = "s59"
vLANE = 1; vX = 2; vU = 6; vDK = 10; vWR = 14; vL16 = 18; vTAG = 19

nstamp = [0]
def stamp(i):
    if STAMPS:
        a(f"s_memrealtime s[{62+2*i}:{63+2*i}]\ns_waitcnt lgkmcnt(0)")

def unpack(dst, src, n=4):
    out = []
    for i in range(n):
        out.append(f"v_lshlrev_b32 {v(dst+2*i)}, 16, {v(src+i)}")
        out.append(f"v_and_b32 {v(dst+2*i+1)}, 0xffff0000, {v(src+i)}")
    return out
def pack(dst, src, n=4):
    return [f"v_cvt_pk_bf16_f32 {v(dst+i)}, {v(src+2*i)}, {v(src+2*i+1)}" for i in range(n)]
def emit(lst):
    for x in lst: a(x)
def interleave(main, fill, every=1):
    out = []; fi = 0
    for x in main:
        out.append(x)
        for _ in range(every):
            if fi < len(fill): out.append(fill[fi]); fi += 1
    out += fill[fi:]
    return out
DPP_STEPS = ["row_shr:1 row_mask:0xf bank_mask:0xf", "row_shr:2 row_mask:0xf bank_mask:0xf", "row_shr:4 row_mask:0xf bank_mask:0xf",
             "row_shr:8 row_mask:0xf bank_mask:0xf", "row_bcast:15 row_mask:0xa bank_mask:0xf", "row_bcast:31 row_mask:0xc bank_mask:0xf"]
def dpp_reduce(op, regs):
    for st in DPP_STEPS:
        for r in regs: a(f"{op}_dpp {v(r)}, {v(r)}, {v(r)} {st}")

def ln(F, D, T, OUT):
    S1, S2 = T+4, T+5
    a(f"v_readfirstlane_b32 s48, {v(F)}")
    for i in range(4):
        a(f"v_pk_add_f32 {v(D+2*i,2)}, {v(F+2*i,2)}, s[48:49] op_sel_hi:[1,0] neg_lo:[0,1] neg_hi:[0,1]")
    a(f"v_pk_add_f32 {v(T,2)}, {v(D,2)}, {v(D+2,2)}")
    a(f"v_pk_mul_f32 {v(T+2,2)}, {v(D,2)}, {v(D,2)}")
    a(f"v_pk_add_f32 {v(T,2)}, {v(T,2)}, {v(D+4,2)}")
    a(f"v_pk_fma_f32 {v(T+2,2)}, {v(D+2,2)}, {v(D+2,2)}, {v(T+2,2)}")
    a(f"v_pk_add_f32 {v(T,2)}, {v(T,2)}, {v(D+6,2)}")
    a(f"v_pk_fma_f32 {v(T+2,2)}, {v(D+4,2)}, {v(D+4,2)}, {v(T+2,2)}")
    a(f"v_add_f32 {v(S1)}, {v(T)}, {v(T+1)}")
    a(f"v_pk_fma_f32 {v(T+2,2)}, {v(D+6,2)}, {v(D+6,2)}, {v(T+2,2)}")
    a(f"v_add_f32 {v(S2)}, {v(T+2)}, {v(T+3)}")
    a("s_mov_b64 exec, -1")
    dpp_reduce("v_add_f32", [S1, S2])
    inv = hex(f2u(1.0/448))
    a(f"v_mul_f32 {v(S1)}, {inv}, {v(S1)}")
    a(f"v_mul_f32 {v(S2)}, {inv}, {v(S2)}")
    a(f"v_fma_f32 {v(S2)}, -{v(S1)}, {v(S1)}, {v(S2)}")
    a(f"v_add_f32 {v(S1)}, s48, {v(S1)}")
    a(f"v_max_f32 {v(S2)}, 0, {v(S2)}")
    a(f"v_cvt_pk_bf16_f32 {v(T)}, {v(S1)}, {v(S2)}")
    a(f"v_lshlrev_b32 {v(T+1)}, 16, {v(T)}")
    a(f"v_and_b32 {v(T+2)}, 0xffff0000, {v(T)}")
    a(f"v_readlane_b32 s50, {v(T+1)}, 63")
    chain = [f"v_add_f32 {v(T+2)}, {hex(f2u(1e-5))}, {v(T+2)}",
             f"v_cvt_pk_bf16_f32 {v(T+2)}, {v(T+2)}, {v(T+2)}",
             f"v_and_b32 {v(T+2)}, 0xffff0000, {v(T+2)}",
             f"v_sqrt_f32 {v(T+2)}, {v(T+2)}"]
    emit(chain)
    fill = [f"v_pk_add_f32 {v(D+2*i,2)}, {v(F+2*i,2)}, s[50:51] op_sel_hi:[1,0] neg_lo:[0,1] neg_hi:[0,1]" for i in range(4)]
    fill += pack(OUT, D) + unpack(D, OUT)
    chain = [fill[0],
             f"v_cvt_pk_bf16_f32 {v(T+2)}, {v(T+2)}, {v(T+2)}",
             f"v_and_b32 {v(T+2)}, 0xffff0000, {v(T+2)}",
             f"v_rcp_f32 {v(T+2)}, {v(T+2)}",
             fill[1],
             f"v_readlane_b32 s52, {v(T+2)}, 63"]
    emit(chain); emit(fill[2:])
    for i in range(4):
        a(f"v_pk_mul_f32 {v(D+2*i,2)}, {v(D+2*i,2)}, s[52:53] op_sel_hi:[1,0]")
    emit(pack(OUT, D))

def poll(name, loads, checks, restore="-1"):
    a(f"s_mov_b32 {sCNT}, 0")
    a(f"L_{name}:")
    emit(loads)
    a(f"s_add_u32 {sCNT}, {sCNT}, 1")
    a(f"s_cmp_gt_u32 {sCNT}, {SPIN}")
    a("s_waitcnt vmcnt(0)")
    a(f"s_cbranch_scc1 L_{name}_x")
    for i, (r, kind) in enumerate(checks):
        dst = "vcc" if i == 0 else "s[60:61]"
        if kind == 'tag': a(f"v_cmp_ne_u32 {dst}, {v(r)}, {v(vTAG)}")
        else: a(f"v_cmp_eq_u32 {dst}, -1, {v(r)}")
        if i: a("s_or_b64 vcc, vcc, s[60:61]")
    a("s_and_b64 exec, exec, vcc")
    a(f"s_cbranch_execnz L_{name}")
    a(f"L_{name}_x:")
    a(f"s_mov_b64 exec, {restore}")

a(f"""
s_load_dwordx16 s[4:19], s[0:1], 0
s_load_dwordx16 s[20:35], s[0:1], 64
s_load_dwordx2 s[36:37], s[0:1], 128
s_getpc_b64 {sPC}
L_pc:
s_cmp_ge_u32 s2, 256
s_cbranch_scc1 L_end
v_lshrrev_b32 v20, 6, v0
v_and_b32 {v(vLANE)}, 63, v0
s_and_b32 {sXG}, s2, 7
v_readfirstlane_b32 {sW}, v20
s_lshr_b32 {sRANK}, s2, 3
s_lshl_b32 {sQ}, {sXG}, 5
s_add_u32 {sQ}, {sQ}, {sRANK}
v_lshlrev_b32 {v(vL16)}, 4, {v(vLANE)}
s_lshl_b32 {sT0}, {sQ}, 3
s_add_u32 {sT0}, {sT0}, {sW}
s_mul_i32 {sT0}, {sT0}, 896
s_mov_b32 s46, -1
s_mov_b32 s47, 0xffffff
v_add_u32 v21, {sT0}, {v(vL16)}
v_mov_b32 v22, 0
""")
if STAMPS:
    for i in range(1,13): a(f"s_mov_b32 s{62+2*i}, 0")
stamp(0)
if STAMPS: a("s_memtime s[88:89]\ns_waitcnt lgkmcnt(0)")
a(f"""
s_mov_b64 exec, {sE56}
s_waitcnt lgkmcnt(0)
global_load_dwordx4 {v(vX,4)}, v21, {sX}
global_load_dword {v(vTAG)}, v22, {sWS} sc1
global_load_dwordx4 {v(vDK,4)}, {v(vL16)}, {sDK}
global_load_dwordx4 {v(vWR,4)}, {v(vL16)}, {sWR}
s_mov_b64 exec, -1
s_mul_i32 {sP}, {sXG}, 28
s_add_u32 {sP}, {sP}, {sRANK}
v_mov_b32 v24, 0
v_mov_b32 v25, 0
v_mov_b32 v26, 0
v_mov_b32 v27, 0
s_cmp_ge_u32 {sW}, 4
s_cbranch_scc1 L_pro_io
s_cmp_ge_u32 {sRANK}, 28
s_cbranch_scc1 L_pro_idle
""")
vPAR = 216
vTAB = 224
a(f"""
s_lshl_b32 {sT0}, {sP}, 10
s_lshl_b32 {sT1}, {sW}, 8
s_add_u32 {sT0}, {sT0}, {sT1}
v_lshl_add_u32 v21, {v(vLANE)}, 2, {sT0}
s_lshr_b32 {sT1}, {sW}, 1
s_lshl_b32 {sT2}, {sP}, 1
s_add_u32 {sT1}, {sT1}, {sT2}
s_lshl_b32 {sT1}, {sT1}, 1
v_mov_b32 v23, {sT1}
global_load_dword {v(vPAR+0)}, v21, {sAR}
global_load_dword {v(vPAR+1)}, v21, {sAI}
global_load_ushort {v(vPAR+6)}, v23, {sLD}
global_load_dword {v(vPAR+2)}, v21, {sBR}
global_load_dword {v(vPAR+3)}, v21, {sBI}
global_load_dword {v(vPAR+4)}, v21, {sCR}
global_load_dword {v(vPAR+5)}, v21, {sCI}
s_and_b32 {sT1}, {sW}, 1
s_lshl_b32 {sT1}, {sT1}, 11
s_add_u32 {sT1}, {sT1}, L_table-L_pc
v_lshl_add_u32 v21, {v(vLANE)}, 5, {sT1}
global_load_dwordx4 {v(vTAB,4)}, v21, {sPC}
global_load_dwordx4 {v(vTAB+4,4)}, v21, {sPC} offset:16
s_mul_i32 {sT0}, {sW}, {KC_W}
s_add_u32 {sT0}, {sT0}, {L_KC}
v_add_u32 v21, {sT0}, {v(vL16)}
ds_write_b128 v21, v[24:27]
s_waitcnt vmcnt(11)
s_branch L_ln1
L_pro_idle:
s_waitcnt vmcnt(2)
s_branch L_ln1
L_pro_io:
""")
a(f"""
s_and_b32 {sT0}, {sRANK}, 1
s_lshl_b32 {sT0}, {sT0}, 2
s_add_u32 {sT0}, {sT0}, {sW}
s_sub_u32 {sT0}, {sT0}, 4
s_lshl_b32 {sT0}, {sT0}, 12
v_lshl_add_u32 v21, {v(vLANE)}, 7, {sT0}
v_min_u32 v21, L_table-L_pc, v21
s_mov_b32 exec_hi, 0
global_load_dword v255, v21, {sPC}
s_mov_b64 exec, 0xff
v_add_u32 v21, {L_T}, {v(vL16)}
v_add_u32 v28, {L_MISC}, {v(vL16)}
ds_write_b128 v21, v[24:27] offset:{23*256}
ds_write_b128 v21, v[24:27] offset:{23*256+T_CH}
ds_write_b128 v21, v[24:27] offset:{L_U-L_T}
ds_write_b128 v21, v[24:27] offset:{L_U-L_T+U_CH}
ds_write_b128 v28, v[24:27]
ds_write_b128 v28, v[24:27] offset:128
ds_write_b128 v28, v[24:27] offset:256
s_mov_b64 exec, -1
s_cmp_ge_u32 {sRANK}, 28
s_cbranch_scc1 L_pro_io2
s_lshl_b32 {sT0}, {sP}, 13
s_lshl_b32 {sT1}, {sW}, 11
s_add_u32 {sT0}, {sT0}, {sT1}
s_add_u32 {sT0}, {sT0}, {WS_Y2 - 4*2048}
v_add_u32 v21, {sT0}, {v(vL16)}
v_mov_b32 v28, -1
v_mov_b32 v29, -1
v_mov_b32 v30, -1
v_mov_b32 v31, -1
global_store_dwordx4 v21, v[28:31], {sWS} sc1
global_store_dwordx4 v21, v[28:31], {sWS} offset:1024 sc1
s_waitcnt vmcnt(5)
s_branch L_ln1
L_pro_io2:
s_waitcnt vmcnt(3)
L_ln1:
""")
stamp(1)
F1, D1, T1 = 32, 40, 48
a(f"v_mov_b32 {v(T1+4)}, 0\nv_mov_b32 {v(T1+5)}, 0")
a(f"v_readfirstlane_b32 {sTAG}, {v(vTAG)}")
emit(unpack(F1, vX))
a(f"s_mul_i32 {sTAG}, {sTAG}, 1664525")
a(f"s_add_u32 {sTAG}, {sTAG}, 1013904223")
a(f"s_mul_i32 {sT0}, {sW}, {XT_ROW}")
a(f"s_add_u32 {sT0}, {sT0}, {L_XT}")
a(f"v_mov_b32 {v(vTAG)}, {sTAG}")
a(f"v_add_u32 v21, {sT0}, {v(vL16)}")
a(f"s_mov_b64 exec, {sE56}")
ln(F1, D1, T1, vU)
a(f"""
s_mov_b64 exec, {sE56}
ds_write_b128 v21, {v(vU,4)}
s_mov_b64 exec, -1
s_cmp_ge_u32 {sW}, 4
s_waitcnt lgkmcnt(0)
s_barrier
s_cbranch_scc1 L_io
s_cmp_ge_u32 {sRANK}, 28
s_cbranch_scc1 L_ffn_load
""")
stamp(2)
z1, z2, z4, z6, z8, z256, z512, z768, z1024, t0, t1, La, Lb = [24+2*i for i in range(13)]
cv = [50, 51, 52, 53]; vAB = 54; vDT = 56; vRD = 57; vBC = 58
FR = 64; KACC = 128
cvi = [0]
def cmul(D, X, Y):
    return [f"v_pk_mul_f32 {v(D,2)}, {v(X,2)}, {v(Y,2)} op_sel:[0,0] op_sel_hi:[0,1]",
            f"v_pk_fma_f32 {v(D,2)}, {v(X,2)}, {v(Y,2)}, {v(D,2)} op_sel:[1,1,0] op_sel_hi:[1,0,1] neg_lo:[1,0,0]"]
def put(row, X, conj=False):
    c = cv[cvi[0] % 4]; cvi[0] += 1
    return [f"v_cvt_pk_bf16_f32 {v(c)}, {v(X)}, {'-' if conj else ''}{v(X+1)}",
            f"ds_write_addtid_b32 {v(c)} offset:{row*TR_ROW}"]
def kgen_prep(rho):
    un = (lambda d, s: f"v_lshlrev_b32 {v(d)}, 16, {v(s)}") if rho == 0 else (lambda d, s: f"v_and_b32 {v(d)}, 0xffff0000, {v(s)}")
    o = [un(vAB, vPAR), un(vAB+1, vPAR+1), un(vBC, vPAR+2), un(vBC+1, vPAR+3), un(vBC+2, vPAR+4), un(vBC+3, vPAR+5)]
    o += [f"v_pk_mul_f32 {v(vAB,2)}, {v(vAB,2)}, {v(vDT,2)} op_sel_hi:[1,0]",
          f"v_pk_mul_f32 {v(vBC,2)}, {v(vBC,2)}, {v(vDT,2)} op_sel_hi:[1,0]",
          f"v_mul_f32 {v(vAB)}, {hex(f2u(1.4426950408889634))}, {v(vAB)}",
          f"v_mul_f32 {v(vAB+1)}, 0.15915494, {v(vAB+1)}",
          f"v_mul_f32 {v(t0)}, {hex(f2u(256.0))}, {v(vAB)}",
          f"v_mul_f32 {v(t0+1)}, {hex(f2u(256.0))}, {v(vAB+1)}",
          f"v_fract_f32 {v(vAB+1)}, {v(vAB+1)}",
          f"v_fract_f32 {v(t0+1)}, {v(t0+1)}",
          f"v_exp_f32 {v(vAB)}, {v(vAB)}",
          f"v_cos_f32 {v(z1)}, {v(vAB+1)}",
          f"v_sin_f32 {v(z1+1)}, {v(vAB+1)}",
          f"v_exp_f32 {v(t0)}, {v(t0)}",
          f"v_cos_f32 {v(z256)}, {v(t0+1)}",
          f"v_sin_f32 {v(z256+1)}, {v(t0+1)}",
          f"v_pk_mul_f32 {v(z1,2)}, {v(z1,2)}, {v(vAB,2)} op_sel_hi:[1,0]"]
    o += cmul(La, vBC, vBC+2)
    o += [f"v_pk_mul_f32 {v(z256,2)}, {v(z256,2)}, {v(t0,2)} op_sel_hi:[1,0]"]
    o += cmul(z2, z1, z1) + cmul(z4, z2, z2) + cmul(z8, z4, z4) + cmul(z6, z4, z2)
    return o
def kgen_rows():
    H = []
    H += put(1, z1) + put(2, z2) + put(4, z4) + put(6, z6) + put(8, z256)
    H += cmul(t0, z2, z1) + put(3, t0) + cmul(t1, z4, z1) + put(5, t1) + cmul(t0, z6, z1) + put(7, t0)
    H += cmul(t1, z256, z2) + put(9, t1) + cmul(t0, z256, z4) + put(10, t0) + cmul(t1, z256, z6) + put(11, t1)
    H += cmul(z512, z256, z256) + put(12, z512) + cmul(t0, z512, z4) + put(13, t0)
    H += cmul(z768, z512, z256) + put(14, z768) + cmul(t1, z768, z4) + put(15, t1)
    H += cmul(z1024, z512, z512) + put(16, z1024) + cmul(t0, z1024, z256) + put(17, t0)
    H += cmul(t1, z1024, z512) + put(18, t1) + cmul(t0, z1024, z768) + put(20, t0) + cmul(t1, z1024, z1024) + put(21, t1)
    cur, nxt = La, Lb
    for j in range(32):
        H += put(22+j, cur, conj=True)
        if j < 31:
            H += cmul(nxt, cur, z8); cur, nxt = nxt, cur
    return H
def kgen_reads():
    o = []
    for s in range(8):
        o.append(f"ds_read_b128 {v(FR+8*s,4)}, {v(vRD)} offset:{32*s}")
        o.append(f"ds_read_b128 {v(FR+8*s+4,4)}, {v(vRD)} offset:{22*TR_ROW+32*s}")
    return o
def kgen_mfma(s, first):
    return f"v_mfma_f32_32x32x16_bf16 {v(KACC,16)}, {v(FR+8*s,4)}, {v(FR+8*s+4,4)}, {'0' if first else v(KACC,16)}"

a(f"""
s_mul_i32 {sT0}, {sW}, {TR_W}
s_mov_b32 m0, {sT0}
v_and_b32 v20, 31, {v(vLANE)}
v_lshrrev_b32 v21, 5, {v(vLANE)}
v_mul_u32_u24 {v(vRD)}, {TR_ROW}, v20
v_lshl_add_u32 {v(vRD)}, v21, 4, {v(vRD)}
v_add_u32 {v(vRD)}, {sT0}, {v(vRD)}
v_mov_b32 v22, 0x3f80
ds_write_addtid_b32 v22 offset:0
s_waitcnt vmcnt(2)
v_lshlrev_b32 {v(vDT)}, 16, {v(vPAR+6)}
v_mul_f32 {v(vDT)}, {hex(f2u(1.4426950408889634))}, {v(vDT)}
v_exp_f32 {v(vDT)}, {v(vDT)}
v_cvt_pk_bf16_f32 {v(vDT)}, {v(vDT)}, {v(vDT)}
v_and_b32 {v(vDT)}, 0xffff0000, {v(vDT)}
""")
emit(kgen_prep(0)); emit(kgen_rows()); emit(kgen_reads())
emit(kgen_prep(1))
a("s_waitcnt lgkmcnt(0)")
rows = kgen_rows(); k = 0
for i, x in enumerate(rows):
    if i % 12 == 0 and k < 8:
        a(kgen_mfma(k, k == 0)); k += 1
    a(x)
emit(kgen_reads())
vTW, vTB, vKW, vA, vB, vFL = 20, 21, 22, 23, 232, 233
GA = 144
a(f"""
s_lshr_b32 {sT1}, {sW}, 1
s_and_b32 {sT2}, {sW}, 1
s_mul_i32 {sT0}, {sT1}, {T_CH}
s_add_u32 {sT0}, {sT0}, {L_T}
v_lshlrev_b32 {v(vTW)}, 3, v20
v_lshl_add_u32 {v(vTW)}, v21, 10, {v(vTW)}
s_lshl_b32 {sT3}, {sT2}, 2
s_add_u32 {sT3}, {sT3}, {sT0}
v_add_u32 {v(vTW)}, {sT3}, {v(vTW)}
v_mov_b32 {v(vTB)}, {sT0}
s_waitcnt vmcnt(0)
""")
for k2 in range(15):
    a(f"v_add_u32_sdwa {v(GA+k2)}, {v(vTAB+k2//2)}, {v(vTB)} dst_sel:DWORD dst_unused:UNUSED_PAD src0_sel:WORD_{k2%2} src1_sel:DWORD")
for s in range(8):
    a(f"s_waitcnt lgkmcnt({14-2*s})")
    a(kgen_mfma(s, False))
a(f"""
s_mul_i32 {sT0}, {sW}, {KC_W}
s_add_u32 {sT0}, {sT0}, {L_KC}
v_lshrrev_b32 {v(vKW)}, 16, {v(vTAB+7)}
v_add_u32 {v(vKW)}, {sT0}, {v(vKW)}
v_bfe_u32 v24, {v(vLANE)}, 2, 2
v_mul_u32_u24 {v(vA)}, {KC_ROW}, v24
v_and_b32 v24, 3, {v(vLANE)}
v_lshl_add_u32 {v(vA)}, v24, 6, {v(vA)}
v_lshrrev_b32 v25, 4, {v(vLANE)}
v_lshl_add_u32 {v(vA)}, v25, 4, {v(vA)}
v_add_u32 {v(vA)}, {sT0}, {v(vA)}
s_mul_i32 {sT0}, {sT1}, {U_CH}
s_lshl_b32 {sT3}, {sT2}, 6
s_add_u32 {sT0}, {sT0}, {sT3}
s_add_u32 {sT0}, {sT0}, {L_U + 128 - 120}
v_and_b32 v24, 15, {v(vLANE)}
v_lshlrev_b32 {v(vB)}, 3, v24
v_lshl_add_u32 {v(vB)}, v25, 4, {v(vB)}
v_add_u32 {v(vB)}, {sT0}, {v(vB)}
s_lshl_b32 {sT0}, {sW}, 2
s_add_u32 {sT0}, {sT0}, {L_MISC+M_FLAG}
v_mov_b32 {v(vFL)}, {sT0}
v_mov_b32 v24, 1
""")
for r in range(11):
    a(f"ds_write_b32 {v(vTW)}, {v(KACC+r)} offset:{(8*(r>>2)+(r&3))*256}")
a(f"""
ds_write_b32 {v(vFL)}, v24
v_xor_b32 {v(vFL)}, 4, {v(vFL)}
s_mov_b32 {sCNT}, 0
L_pair:
ds_read_b32 v24, {v(vFL)}
s_add_u32 {sCNT}, {sCNT}, 1
s_cmp_gt_u32 {sCNT}, {SPIN}
s_waitcnt lgkmcnt(0)
s_cbranch_scc1 L_pair_x
v_cmp_eq_u32 vcc, 0, v24
s_cbranch_vccnz L_pair
L_pair_x:
""")
GV = 24
for k2 in range(15):
    a(f"ds_read_b64 {v(GV+2*k2,2)}, {v(GA+k2)}")
GO = 56
def gran(base, kmap):
    o = []
    for r in range(4):
        for i in range(4):
            o.append(f"v_cvt_pk_bf16_f32 {v(base+4*r+i)}, {v(GV+2*kmap[7+r-2*i])}, {v(GV+2*kmap[6+r-2*i])}")
    return o
a("s_waitcnt lgkmcnt(4)")
for k2 in range(11): a(f"v_add_f32 {v(GV+2*k2)}, {v(GV+2*k2)}, {v(GV+2*k2+1)}")
g = gran(GO, list(range(11)))
a("s_waitcnt lgkmcnt(0)")
for k2 in range(11, 15): a(f"v_add_f32 {v(GV+2*k2)}, {v(GV+2*k2)}, {v(GV+2*k2+1)}")
for r in range(4):
    emit(g[4*r:4*r+4]); a(f"ds_write_b128 {v(vKW)}, {v(GO+4*r,4)} offset:{64*r}")
g = gran(GO+16, [11]+[12]*6+[13]+[14]*3)
for r in range(4):
    emit(g[4*r:4*r+4]); a(f"ds_write_b128 {v(vKW)}, {v(GO+16+4*r,4)} offset:{64*r+16*KC_ROW}")
ACC, BF, AF = 24, 56, 88
def Areg(aa, g): return AF + 32*g + 4*aa
for g2 in range(4):
    for aa in range(8):
        a(f"ds_read_b128 {v(Areg(aa,g2),4)}, {v(vA)} offset:{(4*aa-g2+3)*KC_ROW}")
a(f"s_mul_i32 {sT0}, {sW}, {TR_W}")
a(f"v_add_u32 v20, {sT0}, {v(vL16)}")
stamp(3)
a("s_barrier")
stamp(4)
def Bload(b, g): return [f"ds_read_b64 {v(BF+4*b,2)}, {v(vB)} offset:{512*b+128*g}", f"ds_read_b64 {v(BF+4*b+2,2)}, {v(vB)} offset:{512*b+128*g+8}"]
def cm(nu, aa, b, g, first):
    return f"v_mfma_f32_16x16x32_bf16 {v(ACC+4*nu,4)}, {v(Areg(aa,g),4)}, {v(BF+4*b,4)}, {'0' if first else v(ACC+4*nu,4)}"
for b in range(8): emit(Bload(b, 0))
for g2 in range(3):
    for b in range(8):
        a("s_waitcnt lgkmcnt(14)")
        for aa in range(8-b): a(cm(aa+b, aa, b, g2, g2 == 0 and b == 0))
        emit(Bload(b, g2+1))
pend = []
for nu in range(8):
    a(f"s_waitcnt lgkmcnt({min(15, 2*(7-nu) + max(0, nu-2))})" if nu < 7 else f"s_waitcnt lgkmcnt({max(0,nu-2)})")
    for aa in range(nu+1): a(cm(nu, aa, nu-aa, 3, False))
    if nu >= 2: a(f"ds_write_b128 v20, {v(ACC+4*(nu-2),4)} offset:{1024*(nu-2)}")
a(f"ds_write_b128 v20, {v(ACC+24,4)} offset:{1024*6}")
a(f"ds_write_b128 v20, {v(ACC+28,4)} offset:{1024*7}")
a("s_branch L_conv_epi")

a(f"""
L_io:
s_sub_u32 {sT1}, {sW}, 4
v_bfe_u32 v20, {v(vLANE)}, 2, 2
v_mul_u32_u24 v20, {XT_ROW}, v20
v_lshrrev_b32 v21, 4, {v(vLANE)}
v_lshl_add_u32 v20, v21, 5, v20
v_and_b32 v21, 3, {v(vLANE)}
v_lshl_add_u32 v20, v21, 3, v20
s_mul_i32 {sT0}, {sT1}, 224
s_add_u32 {sT0}, {sT0}, {L_XT}
v_add_u32 v20, {sT0}, v20
ds_read_b64_tr_b16 v[24:25], v20
ds_read_b64_tr_b16 v[26:27], v20 offset:{4*XT_ROW}
ds_read_b64_tr_b16 v[28:29], v20 offset:112
ds_read_b64_tr_b16 v[30:31], v20 offset:{4*XT_ROW+112}
s_lshl_b32 {sT0}, {sQ}, 13
s_lshl_b32 {sT2}, {sT1}, 11
s_add_u32 {sT0}, {sT0}, {sT2}
s_add_u32 {sT0}, {sT0}, {WS_U1}
v_add_u32 v21, {sT0}, {v(vL16)}
s_mov_b64 exec, {sE56}
s_waitcnt lgkmcnt(2)
global_store_dwordx4 v21, v[24:27], {sWS} sc1
s_waitcnt lgkmcnt(0)
global_store_dwordx4 v21, v[28:31], {sWS} offset:1024 sc1
s_mov_b64 exec, -1
v_and_b32 v22, 8, {v(vLANE)}
v_mul_u32_u24 v22, {(1024-128)//8}, v22
v_add_u32 v22, v21, v22
v_mov_b32 v32, {sTAG}
v_mov_b32 v33, {sTAG}
v_mov_b32 v34, {sTAG}
v_mov_b32 v35, {sTAG}
s_lshl_b32 {sT0}, {sT1}, 19
s_lshl_b32 {sT2}, {sXG}, 10
s_add_u32 {sT0}, {sT0}, {sT2}
s_add_u32 {sT0}, {sT0}, {WS_U1}
v_lshl_add_u32 v23, {v(vLANE)}, 13, {sT0}
s_lshl_b32 {sT2}, {sRANK}, 5
s_add_u32 {sT0}, {sT0}, {sT2}
v_lshrrev_b32 v36, 1, {v(vLANE)}
v_and_b32 v37, 1, {v(vLANE)}
v_lshl_add_u32 v38, v36, 13, {sT0}
v_lshl_add_u32 v38, v37, 4, v38
v_add_u32 v39, 0x40000, v38
v_mul_u32_u24 v40, {U_CH}, v37
v_lshl_add_u32 v40, v36, 4, v40
s_lshl_b32 {sT0}, {sT1}, 10
s_add_u32 {sT0}, {sT0}, {L_U+128}
v_add_u32 v40, {sT0}, v40
s_mov_b64 exec, 0xffff
s_waitcnt vmcnt(0)
global_store_dwordx4 v22, v[32:35], {sWS} offset:896 sc1
s_mov_b64 exec, -1
""")
stamp(2)
a(f"""
s_cmp_lt_u32 {sRANK}, 28
s_cbranch_scc1 L_io2
s_barrier
L_io2:
s_waitcnt vmcnt(0)
""")
poll("p1", [f"global_load_dword v41, v23, {sWS} offset:896 sc1"], [(41, 'tag')])
stamp(3)
a(f"""
s_cmp_ge_u32 {sRANK}, 28
s_cbranch_scc1 L_ffn_stage
global_load_dwordx4 v[24:27], v38, {sWS} sc1
global_load_dwordx4 v[28:31], v39, {sWS} sc1
s_waitcnt vmcnt(1)
ds_write_b128 v40, v[24:27]
s_waitcnt vmcnt(0)
ds_write_b128 v40, v[28:31] offset:512
s_waitcnt lgkmcnt(0)
s_barrier
""")
stamp(4)
a(f"""
s_lshl_b32 {sT0}, s2, 3
s_add_u32 {sT0}, {sT0}, {sW}
s_cmp_lg_u32 {sT0}, 4
s_cbranch_scc1 L_conv_epi
v_mov_b32 v20, 0
s_mov_b64 exec, 1
global_store_dword v20, {v(vTAG)}, {sWS} sc1
s_mov_b64 exec, -1
""")
a(f"""
L_conv_epi:
s_lshl_b32 {sT0}, {sW}, 10
v_add_u32 v20, {sT0}, {v(vL16)}
s_lshl_b32 {sT1}, {sP}, 13
s_add_u32 {sT1}, {sT1}, {WS_Y2}
v_add_u32 v21, {sT1}, v20
s_waitcnt lgkmcnt(0)
s_barrier
""")
stamp(5)
a(f"""
ds_read_b128 v[24:27], v20
ds_read_b128 v[28:31], v20 offset:{TR_W}
ds_read_b128 v[32:35], v20 offset:{2*TR_W}
ds_read_b128 v[36:39], v20 offset:{3*TR_W}
s_waitcnt lgkmcnt(2)
v_pk_add_f32 v[24:25], v[24:25], v[28:29]
v_pk_add_f32 v[26:27], v[26:27], v[30:31]
s_waitcnt lgkmcnt(0)
v_pk_add_f32 v[32:33], v[32:33], v[36:37]
v_pk_add_f32 v[34:35], v[34:35], v[38:39]
v_cvt_pk_bf16_f32 v40, v24, v32
v_cvt_pk_bf16_f32 v41, v25, v33
v_cvt_pk_bf16_f32 v42, v26, v34
v_cvt_pk_bf16_f32 v43, v27, v35
v_min_u32 v40, -2, v40
global_store_dwordx4 v21, v[40:43], {sWS} sc1
s_mov_b32 {sT3}, 0
s_branch L_x2
""")
SG, SD, WGU, WDN = 24, 136, 192, 104
a(f"""
L_ffn_load:
s_barrier
s_lshl_b32 {sP}, {sXG}, 2
s_add_u32 {sP}, {sP}, {sRANK}
s_sub_u32 {sP}, {sP}, 28
s_cmp_ge_u32 {sP}, 28
s_cbranch_scc1 L_ffn_done
v_lshrrev_b32 v20, 3, v0
v_and_b32 v21, 7, v0
v_mul_u32_u24 v22, 3584, v20
v_lshl_add_u32 v22, v21, 4, v22
s_lshl_b32 {sT0}, {sP}, 7
v_add_u32 v22, {sT0}, v22
""")
for i in range(14):
    a(f"global_load_dwordx4 {v(SG+8*i,4)}, v22, {sWG}")
    a(f"global_load_dwordx4 {v(SG+8*i+4,4)}, v22, {sWU}")
    if i < 13: a(f"v_add_u32 v22, {32*3584}, v22")
a(f"""
s_mul_i32 {sT0}, {sP}, {64*896}
v_lshl_add_u32 v22, v0, 4, {sT0}
""")
for i in range(14):
    a(f"global_load_dwordx4 {v(SD+4*i,4)}, v22, {sWD}")
    if i < 13: a(f"v_add_u32 v22, 4096, v22")
a(f"""
v_mul_u32_u24 v22, {WG_ROW}, v20
v_lshl_add_u32 v22, v21, 4, v22
v_add_u32 v23, {7*32*WG_ROW}, v22
""")
for i in range(14):
    a(f"s_waitcnt vmcnt({14+26-2*i})")
    base, off = (22, i*32*WG_ROW) if i < 7 else (23, (i-7)*32*WG_ROW)
    a(f"ds_write_b128 {v(base)}, {v(SG+8*i,4)} offset:{off}")
    a(f"ds_write_b128 {v(base)}, {v(SG+8*i+4,4)} offset:{off+128}")
a("s_branch L_ffn_stage2")
a(f"""
L_ffn_stage:
s_lshl_b32 {sP}, {sXG}, 2
s_add_u32 {sP}, {sP}, {sRANK}
s_sub_u32 {sP}, {sP}, 28
s_cmp_ge_u32 {sP}, 28
s_cbranch_scc1 L_ffn_done
L_ffn_stage2:
v_lshrrev_b32 v20, 4, {v(vLANE)}
v_lshlrev_b32 v20, 3, v20
v_bfe_u32 v21, {v(vLANE)}, 2, 2
v_add_u32 v20, v20, v21
v_mul_u32_u24 v22, {WG_ROW}, v20
v_and_b32 v21, 1, {v(vLANE)}
v_lshl_add_u32 v22, v21, 3, v22
v_and_b32 v21, 2, {v(vLANE)}
v_lshl_add_u32 v22, v21, 6, v22
s_lshl_b32 {sT0}, {sW}, 4
v_add_u32 v22, {sT0}, v22
v_add_u32 v23, {7*32*WG_ROW}, v22
s_waitcnt lgkmcnt(0)
s_barrier
""")
for s in range(14):
    base, off = (22, s*32*WG_ROW) if s < 7 else (23, (s-7)*32*WG_ROW)
    a(f"ds_read_b64_tr_b16 {v(WGU+4*s,2)}, {v(base)} offset:{off}")
    a(f"ds_read_b64_tr_b16 {v(WGU+4*s+2,2)}, {v(base)} offset:{off+4*WG_ROW}")
a(f"""
s_waitcnt lgkmcnt(0)
s_barrier
s_cmp_ge_u32 {sW}, 4
s_cbranch_scc1 L_ffn_stage3
s_mov_b32 {sT0}, {(2**32+55)//56}
s_waitcnt vmcnt(0)
""")
for i in range(14):
    a(f"v_add_u32 v22, {256*i}, v0")
    a(f"v_mul_hi_u32 v23, v22, {sT0}")
    a(f"v_add_lshl_u32 v22, v22, v23, 4")
    a(f"ds_write_b128 v22, {v(SD+4*i,4)}")
a(f"""
L_ffn_stage3:
v_mul_u32_u24 v22, {WD_ROW}, v20
v_and_b32 v21, 3, {v(vLANE)}
v_lshl_add_u32 v22, v21, 3, v22
s_min_u32 {sT0}, {sW}, 6
s_lshl_b32 {sT0}, {sT0}, 7
v_add_u32 v22, {sT0}, v22
s_waitcnt lgkmcnt(0)
s_barrier
""")
for T in range(4):
    for s in range(2):
        for h in range(2):
            a(f"ds_read_b64_tr_b16 {v(WDN+8*T+4*s+2*h,2)}, v22 offset:{(32*s+4*h)*WD_ROW+32*T}")
a(f"""
s_waitcnt lgkmcnt(0)
s_mov_b32 {sT3}, 1
s_branch L_x2
L_ffn_done:
s_waitcnt vmcnt(0)
s_barrier
s_mov_b32 {sT3}, 1
""")
XF, UD, Y, F2, D2, T2, HP, L2, OP, G = 20, 28, 36, 40, 48, 56, 62, 66, 70, 76
vYA, vYW, vYR, vOA, vR = 88, 89, 90, 91, 92
a("L_x2:")
emit(unpack(F2+0, vU)); emit(unpack(D2, vDK))
for i in range(4): a(f"v_pk_mul_f32 {v(D2+2*i,2)}, {v(D2+2*i,2)}, {v(F2+2*i,2)}")
emit(pack(HP, D2)); emit(unpack(UD, HP)); emit(unpack(XF, vX))
a(f"""
v_lshrrev_b32 v93, 1, v0
v_and_b32 v94, 1, v0
s_lshl_b32 {sT0}, {sQ}, 5
s_add_u32 {sT0}, {sT0}, {WS_Y2}
v_lshl_add_u32 {v(vYA)}, v93, 13, {sT0}
v_lshl_add_u32 {v(vYA)}, v94, 4, {v(vYA)}
v_mul_u32_u24 {v(vYW)}, {4*YT_ROW}, v94
v_lshl_add_u32 {v(vYW)}, v93, 2, {v(vYW)}
v_add_u32 {v(vYW)}, {L_XT}, {v(vYW)}
s_mul_i32 {sT0}, {sW}, {YT_ROW}
s_add_u32 {sT0}, {sT0}, {L_XT}
v_add_u32 {v(vYR)}, {sT0}, {v(vL16)}
s_lshl_b32 {sT1}, {sQ}, 3
s_add_u32 {sT1}, {sT1}, {sW}
s_mul_i32 {sT0}, {sT1}, 896
v_add_u32 {v(vOA)}, {sT0}, {v(vL16)}
s_sub_u32 {sKEY}, 2047, {sT1}
v_mov_b32 {v(T2+4)}, 0
v_mov_b32 {v(T2+5)}, 0
v_mov_b32 {v(vR)}, 0
s_waitcnt vmcnt(0)
""")
stamp(6)
a(f"""
s_cmp_eq_u32 {sW}, 7
s_cbranch_scc1 L_x2_w
s_cmp_eq_u32 {sT3}, 0
s_cbranch_scc1 L_x2_full
s_mov_b64 exec, 1
""")
poll("p2a", [f"global_load_dwordx4 {v(Y,4)}, {v(vYA)}, {sWS} sc1"], [(Y, 'sent')])
a("L_x2_full:")
poll("p2", [f"global_load_dwordx4 {v(Y,4)}, {v(vYA)}, {sWS} sc1"], [(Y, 'sent')])
for i in range(4): a(f"ds_write_b32 {v(vYW)}, {v(Y+i)} offset:{i*YT_ROW}")
a(f"""
L_x2_w:
s_waitcnt lgkmcnt(0)
s_barrier
""")
stamp(7)
a(f"""
ds_read_b128 {v(Y,4)}, {v(vYR)}
s_mov_b64 exec, {sE56}
s_waitcnt lgkmcnt(0)
""")
emit(unpack(F2, Y))
for i in range(4): a(f"v_pk_add_f32 {v(F2+2*i,2)}, {v(F2+2*i,2)}, {v(UD+2*i,2)}")
emit(pack(HP, F2)); emit(unpack(F2, HP))
for i in range(4): a(f"v_pk_add_f32 {v(F2+2*i,2)}, {v(F2+2*i,2)}, {v(XF+2*i,2)}")
emit(pack(HP, F2)); emit(unpack(F2, HP))
ln(F2, D2, T2, L2)
a(f"s_mov_b64 exec, {sE56}")
for i in range(4): a(f"v_dot2_f32_bf16 {v(vR)}, {v(L2+i)}, {v(vWR+i)}, {v(vR)}")
a("s_mov_b64 exec, -1")
PT = [x for x in sys.argv if x.startswith("--pert=")]
PERT = []
if PT:
    mul_, add_ = [float(t) for t in PT[0][7:].split(",")]
    PERT = [f"v_mul_f32 {v(D2+i)}, {hex(f2u(mul_))}, {v(D2+i)}" for i in range(8)] + [f"v_add_f32 {v(D2+i)}, {hex(f2u(add_))}, {v(D2+i)}" for i in range(8)]
fill = unpack(D2, L2) + [f"v_pk_add_f32 {v(D2+2*i,2)}, {v(D2+2*i,2)}, {v(F2+2*i,2)}" for i in range(4)] + PERT + pack(OP, D2)
emit(fill[:3])
emit(interleave([f"v_add_f32_dpp {v(vR)}, {v(vR)}, {v(vR)} {st}" for st in DPP_STEPS], fill[3:], 2))
a(f"""
s_mov_b64 exec, {sE56}
global_store_dwordx4 {v(vOA)}, {v(OP,4)}, {sOUT} sc1
s_mov_b64 exec, -1
v_readlane_b32 {sT0}, {v(vR)}, 63
s_ashr_i32 {sT1}, {sT0}, 31
s_or_b32 {sT1}, {sT1}, 0x80000000
s_xor_b32 {sT1}, {sT1}, {sT0}
s_and_b32 {sT1}, {sT1}, 0xfffff800
s_or_b32 {sKEY}, {sKEY}, {sT1}
s_lshl_b32 {sT1}, {sW}, 2
s_add_u32 {sT1}, {sT1}, {L_MISC+M_KEY}
v_mov_b32 v93, {sT1}
v_mov_b32 v94, {sKEY}
ds_write_b32 v93, v94
v_mov_b32 v93, {L_MISC+M_KEY}
v_mov_b32 {v(G+0)}, {v(L2+0)}
v_mov_b32 {v(G+1)}, {v(L2+1)}
v_mov_b32 {v(G+2)}, {v(L2+2)}
v_mov_b32 {v(G+3)}, {sTAG}
v_mov_b32 {v(G+4)}, {v(L2+3)}
v_mov_b32 {v(G+5)}, {v(HP+0)}
v_mov_b32 {v(G+6)}, {v(HP+1)}
v_mov_b32 {v(G+7)}, {sTAG}
v_mov_b32 {v(G+8)}, {v(HP+2)}
v_mov_b32 {v(G+9)}, {v(HP+3)}
v_mov_b32 {v(G+10)}, {sT0}
v_mov_b32 {v(G+11)}, {sTAG}
s_waitcnt lgkmcnt(0)
s_barrier
ds_read_b128 v[40:43], v93
ds_read_b128 v[44:47], v93 offset:16
s_lshl_b32 {sT0}, {sQ}, 12
s_add_u32 {sT0}, {sT0}, {WS_R3}
v_add_u32 v48, {sT0}, {v(vL16)}
s_lshl_b32 {sT0}, {sQ}, 7
s_add_u32 {sT0}, {sT0}, {WS_S3}
v_add_u32 v49, {sT0}, {v(vL16)}
v_add_u32 v50, {WS_F5-WS_S3}, v49
v_mov_b32 v96, {sKEY}
v_mov_b32 v97, {sTAG}
v_mov_b32 v98, {sKEY}
v_mov_b32 v99, {sTAG}
s_waitcnt lgkmcnt(0)
v_max3_u32 v40, v40, v41, v42
v_max3_u32 v44, v44, v45, v46
v_max3_u32 v40, v40, v43, v47
v_max_u32 v40, v40, v44
v_cmp_ne_u32 vcc, v40, v94
s_cbranch_vccnz L_notbest
s_mov_b64 exec, 0xff
global_store_dwordx4 v49, v[96:99], {sWS} sc1
s_mov_b64 exec, {sE56}
global_store_dwordx4 v48, {v(G,4)}, {sWS} sc1
global_store_dwordx4 v48, {v(G+4,4)}, {sWS} offset:1024 sc1
global_store_dwordx4 v48, {v(G+8,4)}, {sWS} offset:2048 sc1
s_mov_b64 exec, 0xff
s_waitcnt vmcnt(4)
global_store_dwordx4 v50, v[96:99], {sWS} sc1
s_mov_b64 exec, -1
L_notbest:
""")
stamp(8)
a(f"""
s_cmp_lt_u32 {sRANK}, 28
s_cbranch_scc1 L_fin
s_cmp_ge_u32 {sP}, 28
s_cbranch_scc1 L_fin
""")
sIDX = "s49"; sRV = "s51"
a(f"""
v_lshrrev_b32 v21, 4, {v(vLANE)}
v_lshlrev_b32 v21, 4, v21
v_add_u32 v20, {L_MISC+M_XS}, v21
s_cmp_lg_u32 {sW}, 0
s_cbranch_scc1 L_ffn_w
v_lshlrev_b32 v22, 7, {v(vLANE)}
v_add_u32 v22, {WS_S3}, v22
v_add_u32 v23, 0x2000, v22
v_add_u32 v24, 0x4000, v22
v_add_u32 v25, 0x6000, v22
s_waitcnt vmcnt(0)
""")
poll("p3", [f"global_load_dwordx2 {v(26+2*i,2)}, {v(22+i)}, {sWS} sc1" for i in range(4)], [(27+2*i, 'tag') for i in range(4)])
a("v_max3_u32 v26, v26, v28, v30\nv_max_u32 v26, v26, v32")
dpp_reduce("v_max_u32", [26])
a(f"""
v_readlane_b32 {sIDX}, v26, 63
s_and_b32 {sIDX}, {sIDX}, 0x7ff
s_sub_u32 {sIDX}, 2047, {sIDX}
s_lshr_b32 {sT0}, {sIDX}, 3
s_lshl_b32 {sT1}, {sT0}, 12
s_add_u32 {sT1}, {sT1}, {WS_R3}
v_add_u32 v22, {sT1}, {v(vL16)}
v_add_u32 v23, {L_MISC+M_XS}, {v(vL16)}
s_mov_b64 exec, {sE56}
""")
poll("p3r", [f"global_load_dwordx4 {v(24+4*i,4)}, v22, {sWS} offset:{1024*i} sc1" for i in range(3)], [(27+4*i, 'tag') for i in range(3)], restore=sE56)
a(f"""
v_mov_b32 v27, v28
v_mov_b32 v31, v30
v_mov_b32 v30, v29
ds_write_b128 v23, v[24:27]
ds_write_b128 v23, v[30:33] offset:{M_HS-M_XS}
v_readfirstlane_b32 {sRV}, v34
s_mov_b64 exec, -1
L_ffn_w:
s_waitcnt lgkmcnt(0)
s_barrier
""")
stamp(9)
XA = 24
for s in range(14): a(f"ds_read_b128 {v(XA+4*s,4)}, v20 offset:{64*s}")
a(f"""
v_bfe_u32 v84, {v(vLANE)}, 2, 2
v_add_u32 v85, {L_MISC+M_GU}, v21
v_mov_b32 v86, {L_MISC+M_ZERO}
""")
for T in range(4):
    a(f"v_cmp_eq_u32 vcc, {T}, v84")
    a(f"v_cndmask_b32 {v(88+T)}, v86, v85, vcc")
for s in range(14):
    a(f"s_waitcnt lgkmcnt({13-s})")
    a(f"v_mfma_f32_16x16x32_bf16 v[80:83], {v(XA+4*s,4)}, {v(WGU+4*s,4)}, {'0' if s == 0 else 'v[80:83]'}")
a(f"""
s_lshl_b32 {sT0}, {sW}, 4
s_add_u32 {sT0}, {sT0}, {L_MISC+M_GU}
v_lshl_add_u32 v92, {v(vLANE)}, 1, {sT0}
s_lshl_b32 {sT0}, {sP}, 12
s_lshl_b32 {sT1}, {sW}, 9
s_add_u32 {sT0}, {sT0}, {sT1}
s_add_u32 {sT0}, {sT0}, {WS_P4}
v_lshl_add_u32 v93, {v(vLANE)}, 3, {sT0}
v_cvt_pk_bf16_f32 v84, v80, v80
v_and_b32 v84, 0xffff0000, v84
v_mul_f32 v85, {hex(f2u(-1.4426950408889634))}, v84
v_exp_f32 v85, v85
v_add_f32 v85, 1.0, v85
v_rcp_f32 v85, v85
v_mul_f32 v85, v84, v85
v_cvt_pk_bf16_f32 v85, v85, v85
v_and_b32 v85, 0xffff0000, v85
v_mul_f32_dpp v85, v84, v85 row_ror:8 row_mask:0xf bank_mask:0xf
v_cvt_pk_bf16_f32 v85, v85, v85
s_mov_b64 exec, 0xff
ds_write_b16 v92, v85
s_mov_b64 exec, -1
s_cmp_eq_u32 {sW}, 7
s_waitcnt lgkmcnt(0)
s_barrier
s_cbranch_scc1 L_fin
""")
for T in range(4):
    for s in range(2): a(f"ds_read_b128 {v(24+8*T+4*s,4)}, {v(88+T)} offset:{64*s}")
for T in range(4):
    for s in range(2):
        a(f"s_waitcnt lgkmcnt({7-2*T-s})")
        a(f"v_mfma_f32_16x16x32_bf16 v[80:83], {v(24+8*T+4*s,4)}, {v(WDN+8*T+4*s,4)}, {'0' if T+s == 0 else 'v[80:83]'}")
a(f"""
v_mov_b32 v81, {sTAG}
global_store_dwordx2 v93, v[80:81], {sWS} sc1
s_cmp_lg_u32 {sW}, 0
s_cbranch_scc1 L_fin
""")
stamp(10)
a(f"""
v_lshrrev_b32 v20, 3, {v(vLANE)}
v_and_b32 v21, 7, {v(vLANE)}
s_lshl_b32 {sT0}, {sP}, 7
s_add_u32 {sT0}, {sT0}, {WS_P4}
v_lshl_add_u32 v22, v20, 12, {sT0}
v_lshl_add_u32 v22, v21, 4, v22
v_add_u32 v23, 0x8000, v22
v_add_u32 v24, 0x10000, v22
v_add_u32 v25, 0x18000, v22
s_lshr_b32 {sT0}, {sIDX}, 3
s_lshl_b32 {sT0}, {sT0}, 7
s_add_u32 {sT0}, {sT0}, {WS_F5}
v_mov_b32 v26, {sT0}
v_cmp_gt_u32 vcc, 32, {v(vLANE)}
v_cndmask_b32 v25, v26, v25, vcc
s_lshl_b32 {sT0}, {sP}, 5
s_add_u32 {sT1}, {sT0}, {L_MISC+M_XS}
v_lshl_add_u32 v26, v21, 2, {sT1}
ds_read_b32 v46, v26
ds_read_b32 v47, v26 offset:{M_HS-M_XS}
s_mul_i32 {sT1}, {sIDX}, 896
s_add_u32 {sT0}, {sT0}, {sT1}
v_lshl_add_u32 v27, v21, 2, {sT0}
v_cvt_pk_bf16_f32 v44, {sRV}, {sRV}
v_and_b32 v44, 0xffff0000, v44
v_mul_f32 v44, {hex(f2u(-1.4426950408889634))}, v44
v_exp_f32 v44, v44
v_add_f32 v44, 1.0, v44
v_rcp_f32 v44, v44
v_cvt_pk_bf16_f32 v44, v44, v44
v_and_b32 v44, 0xffff0000, v44
s_waitcnt lgkmcnt(0)
v_lshlrev_b32 v48, 16, v46
v_and_b32 v49, 0xffff0000, v46
v_lshlrev_b32 v50, 16, v47
v_and_b32 v51, 0xffff0000, v47
s_waitcnt vmcnt(0)
""")
poll("p4", [f"global_load_dwordx4 {v(28+4*i,4)}, {v(22+i)}, {sWS} sc1" for i in range(4)],
     [(29+2*i, 'tag') for i in range(8)])
a(f"""
v_add_f32 v28, v28, v32
v_add_f32 v30, v30, v34
v_add_f32 v28, v28, v36
v_add_f32 v30, v30, v38
s_mov_b32 exec_hi, 0
v_add_f32 v28, v28, v40
v_add_f32 v30, v30, v42
s_mov_b64 exec, -1
v_add_f32_dpp v28, v28, v28 row_ror:8 row_mask:0xf bank_mask:0xf
v_add_f32_dpp v30, v30, v30 row_ror:8 row_mask:0xf bank_mask:0xf
v_mov_b32 v29, v28
v_mov_b32 v31, v30
v_permlane16_swap_b32 v28, v29
v_permlane16_swap_b32 v30, v31
v_add_f32 v28, v28, v29
v_add_f32 v30, v30, v31
v_mov_b32 v29, v28
v_mov_b32 v31, v30
v_permlane32_swap_b32 v28, v29
v_permlane32_swap_b32 v30, v31
v_add_f32 v28, v28, v29
v_add_f32 v30, v30, v31
v_cvt_pk_bf16_f32 v28, v28, v30
v_and_b32 v29, 0xffff0000, v28
v_lshlrev_b32 v28, 16, v28
v_pk_mul_f32 v[28:29], v[28:29], v[44:45] op_sel_hi:[1,0]
v_cvt_pk_bf16_f32 v28, v28, v29
v_and_b32 v29, 0xffff0000, v28
v_lshlrev_b32 v28, 16, v28
v_pk_add_f32 v[28:29], v[28:29], v[48:49]
v_cvt_pk_bf16_f32 v28, v28, v29
v_and_b32 v29, 0xffff0000, v28
v_lshlrev_b32 v28, 16, v28
v_pk_add_f32 v[28:29], v[28:29], v[50:51]
v_cvt_pk_bf16_f32 v28, v28, v29
s_mov_b64 exec, 0xff
global_store_dword v27, v28, {sOUT} sc1
s_mov_b64 exec, -1
""")
stamp(11)
a("L_fin:")
if DIAG:
    a(f"""
s_lshl_b32 {sT0}, s2, 3
s_add_u32 {sT0}, {sT0}, {sW}
s_cmp_lg_u32 {sT0}, {DIAG[0]*8+DIAG[1]}
s_cbranch_scc1 L_end
s_sub_u32 {sT0}, s{62+2*DIAG[2]}, s62
s_lshl_b32 {sT0}, {sT0}, 3
s_add_u32 {sT0}, {sT0}, 3000
s_min_u32 {sT0}, {sT0}, 50000
L_diag:
s_memrealtime s[86:87]
s_waitcnt lgkmcnt(0)
s_sub_u32 {sT1}, s86, s62
s_cmp_lt_u32 {sT1}, {sT0}
s_cbranch_scc1 L_diag
""")
elif STAMPS:
    a(f"""
s_waitcnt vmcnt(0)
s_memrealtime s[86:87]
s_memtime s[90:91]
s_lshl_b32 {sT0}, s2, 3
s_add_u32 {sT0}, {sT0}, {sW}
s_lshl_b32 {sT0}, {sT0}, 6
s_add_u32 {sT0}, {sT0}, {WS_DBG}
v_mov_b32 v20, {sT0}
s_waitcnt lgkmcnt(0)
s_mov_b64 exec, 1
""")
    for i in range(15):
        a(f"v_mov_b32 v21, s{62+2*i}\nglobal_store_dword v20, v21, {sWS} offset:{4*i}")
a("L_end:\ns_endpgm")

n = a.fix_hazards()
check_waitcnt(a)

def rbf(l):
    u = f2u(float(l)); u = (u + 0x7fff + ((u >> 16) & 1)) & 0xffff0000
    return int(struct.unpack("<f", struct.pack("<I", u))[0])
def taddr(l):
    if l < 0: return 23*256
    lr = rbf(l); b, col, off = lr >> 8, (lr >> 3) & 31, lr & 7
    row = [off, 8+off//2, 12+off//4, 14+off//4, 16, 17, 18, 20, 21][b]
    return row*256 + col*8
tab = []
for hw in range(2):
    for lane in range(64):
        n4 = lane >> 2; kq = lane & 3
        N = (n4 & ~3) | ((n4 & 1) << 1) | ((n4 >> 1) & 1)
        MA = 8*N + 7 - 4*hw - kq; MB = MA + 128
        e = [taddr(8*MA-3+k) for k in range(11)]
        eb = [taddr(8*MB-3+k) for k in range(11)]
        assert len(set(eb[1:7])) == 1 and len(set(eb[8:11])) == 1
        e += [eb[0], eb[1], eb[7], eb[8]]
        e.append((N+3)*KC_ROW + kq*16)
        tab.append(e)
table = ".p2align 7\n.type L_table,@object\nL_table:\n" + "".join(".short " + ", ".join(str(x) for x in e) + "\n" for e in tab) + ".size L_table, 4096\n"

ref = open("cdna_kernels/%s.s.ref" % NAME).read()
head = "".join(l + "\n" for l in ref.splitlines() if l.startswith(";") and "@launch" not in l)
out = head + f"; @launch grid=(256,1,1) block=(512,1,1) lds={LDS_SIZE}\n" + f""".amdgcn_target "amdgcn-amd-amdhsa--gfx950"
.text
.globl {NAME}_kernel
.p2align 8
.type {NAME}_kernel,@function
{NAME}_kernel:
""" + a.text() + table + f""".section .rodata,"a"
.p2align 6
.amdhsa_kernel {NAME}_kernel
  .amdhsa_next_free_vgpr 256
  .amdhsa_next_free_sgpr 96
  .amdhsa_accum_offset 256
  .amdhsa_group_segment_fixed_size 0
  .amdhsa_kernarg_size 136
  .amdhsa_user_sgpr_count 2
  .amdhsa_user_sgpr_kernarg_segment_ptr 1
  .amdhsa_system_sgpr_workgroup_id_x 1
  .amdhsa_float_denorm_mode_32 3
.end_amdhsa_kernel
"""
dst = [x for x in sys.argv[1:] if not x.startswith("--")]
dst = dst[0] if dst else "cdna_kernels/%s.s" % NAME
open(dst, "w").write(out)
print("wrote", dst, "instrs", sum(1 for x in a.ins if x.op), "nops added", n, "lds", LDS_SIZE)
```

```python
import re

TRANS = ("v_exp_f32","v_log_f32","v_rcp_f32","v_rsq_f32","v_sqrt_f32","v_sin_f32","v_cos_f32","v_rcp_iflag_f32")
REG_RE = re.compile(r'(?<![\w.])(-|\|)?([vas])(\d+)(?![\w\[])|(?<![\w.])([vas])\[(\d+):(\d+)\]|(?<![\w.])(vcc|exec|m0)(?![\w])')

def regs_of(opnd):
    out = set()
    for m in REG_RE.finditer(opnd):
        if m.group(2): out.add((m.group(2), int(m.group(3))))
        elif m.group(4):
            for i in range(int(m.group(5)), int(m.group(6))+1): out.add((m.group(4), i))
        else: out.add((m.group(7), 0))
    return out

class Ins:
    def __init__(self, text):
        self.text = text
        t = text.split(';')[0].strip()
        self.label = None; self.op = None; self.directive = False
        self.rd = set(); self.wr = set(); self.ops = []
        if not t: self.directive = True; return
        if t.endswith(':'): self.label = t[:-1]; return
        if t.startswith('.'): self.directive = True; return
        p = t.split(None, 1)
        self.op = op = p[0]
        rest = p[1] if len(p) > 1 else ''
        ops = []; depth = 0; cur = ''
        for ch in rest:
            if ch == '[': depth += 1
            if ch == ']': depth -= 1
            if ch == ',' and depth == 0: ops.append(cur.strip()); cur = ''
            else: cur += ch
        if cur.strip(): ops.append(cur.strip())
        if ops:
            last = ops[-1].split(None, 1)
            self.mods = last[1] if len(last) > 1 else ''
            ops[-1] = last[0]
        else: self.mods = ''
        self.ops = ops
        if op.startswith('v_pk_') and op.endswith('_f32'):
            m_ = re.search(r'op_sel:\[([01,]+)\]', self.mods)
            if m_ and m_.group(1)[0] == '0' and '1' in m_.group(1): raise Exception('unsafe packed op_sel beside MFMA: ' + text)
        R = [regs_of(o) for o in ops]
        self.valu = op.startswith('v_') and not op.startswith(('v_mfma', 'v_smfmac'))
        self.mfma = op.startswith(('v_mfma', 'v_smfmac'))
        self.ds = op.startswith('ds_')
        self.vmem = op.startswith(('global_', 'buffer_', 'flat_'))
        self.salu = op.startswith('s_')
        self.trans = any(op.startswith(x) for x in TRANS)
        self.dpp = op.endswith('_dpp')
        self.dot = op.startswith('v_dot')
        self.srcs = []
        if self.mfma:
            self.wr = R[0]; self.A = R[1]; self.B = R[2]; self.C = R[3]; self.rd = R[1] | R[2] | R[3]
            self.passes = 8 if ('32x32x16' in op or op.startswith('v_smfmac')) else 4
            if op.startswith('v_smfmac'):
                self.B = R[2] | R[3]; self.C = R[0]; self.rd |= R[0]
        elif self.valu:
            nd = 1
            if op.startswith(('v_add_co', 'v_sub_co', 'v_addc_co', 'v_subb_co', 'v_mad_u64')): nd = 2
            if op.startswith('v_nop'): nd = 0
            for r in R[:nd]: self.wr |= r
            for r in R[nd:]: self.rd |= r
            self.srcs = R[nd:]
            if op.startswith(('v_permlane', 'v_swap')): self.wr = R[0] | R[1]; self.rd = R[0] | R[1]
            if op.startswith(('v_fmac', 'v_dot2c', 'v_writelane')) or self.dpp or op.endswith('_sdwa'): self.rd |= R[0]
            if op.startswith('v_cmpx'): raise Exception('no cmpx')
        elif self.ds:
            if op.startswith(('ds_read', 'ds_bpermute', 'ds_permute', 'ds_swizzle')) or '_rtn' in op:
                self.wr = R[0]
                for r in R[1:]: self.rd |= r
            else:
                for r in R: self.rd |= r
            if 'addtid' in op: self.rd.add(('m0', 0))
        elif self.vmem:
            if '_load' in op and 'lds' not in op:
                self.wr = R[0]
                for r in R[1:]: self.rd |= r
            elif '_atomic' in op and 'sc0' in self.mods:
                self.wr = R[0]
                for r in R[1:]: self.rd |= r
            else:
                for r in R: self.rd |= r
            self.widestore = set()
            if '_store_dwordx4' in op or '_store_dwordx3' in op:
                self.widestore = R[1] if op.startswith('global_') else R[0]
        elif self.salu:
            nodst = op.startswith(('s_cmp', 's_cbranch', 's_branch', 's_waitcnt', 's_barrier', 's_nop', 's_endpgm', 's_sleep', 's_setprio', 's_bitcmp'))
            if nodst:
                for r in R: self.rd |= r
            else:
                self.wr = set(R[0]) if R else set()
                for r in R[1:]: self.rd |= r
                if 'saveexec' in op: self.wr.add(('exec', 0))
    def ws(self):
        if self.op is None: return 0
        if self.op == 's_nop': return int(self.ops[0], 0) + 1
        return 1

def is_v(r): return r[0] in 'va' and r[0] != 'vcc'
def vset(s): return {r for r in s if r[0] in ('v', 'a')}
def sset(s): return {r for r in s if r[0] in ('s', 'vcc')}

def need(p, c):
    n = 0
    if p.op is None or c.op is None: return 0
    if p.valu:
        wv = vset(p.wr); wsg = sset(p.wr)
        if wv:
            if c.valu and c.op.startswith(('v_readlane', 'v_readfirstlane')) and wv & c.rd: n = max(n, 1)
            if c.valu and c.dpp and wv & c.rd: n = max(n, 2)
            if c.valu and c.op.startswith('v_permlane') and wv & c.rd: n = max(n, 2)
            if c.mfma and wv & c.rd: n = max(n, 3 if p.dot else 2)
            if p.trans and (c.valu or c.ds or c.vmem) and wv & c.rd: n = max(n, 1)
            if p.op.endswith('_sdwa') and c.valu and wv & (c.rd | c.wr): n = max(n, 1)
            if p.dot and (wv & (c.rd | c.wr)):
                if c.op == p.op and len(c.srcs) >= 2 and not (wv & (c.srcs[0] | c.srcs[1])): pass
                else: n = max(n, 3)
        if wsg:
            if c.valu and wsg & c.rd:
                n = max(n, 2)
                if c.op.startswith(('v_readlane', 'v_writelane')): n = max(n, 4)
            if c.vmem and wsg & c.rd: n = max(n, 5)
            if c.salu and wsg & c.rd: n = max(n, 1)
            if c.salu and c.op.startswith('s_cbranch_vcc') and ('vcc', 0) in wsg: n = max(n, 1)
    if p.mfma:
        big = 12 if p.passes == 8 else 8
        if c.mfma:
            if p.wr & (c.A | c.B): n = max(n, big)
            if p.wr & c.C and not (p.wr == c.C and p.passes == c.passes): n = max(n, big - 2)
            if p.wr & c.wr and p.wr != c.C: n = max(n, big)
        elif (c.valu or c.ds or c.vmem) and p.wr & (c.rd | c.wr): n = max(n, big)
        if c.valu and p.C & c.wr: n = max(n, 7 if p.passes == 8 else 3)
    if p.vmem and p.widestore and p.widestore & c.wr: n = max(n, 2)
    if p.salu and ('m0', 0) in p.wr and ('m0', 0) in c.rd and (c.ds or c.vmem): n = max(n, 1)
    return n

class Asm:
    def __init__(self): self.ins = []
    def __call__(self, text):
        for line in text.split('\n'):
            if line.strip(): self.ins.append(Ins(line.strip()))
    def fix_hazards(self):
        i = 0; added = 0
        def branch_srcs():
            d = {}
            for k, x in enumerate(self.ins):
                if x.op and x.op.startswith(('s_cbranch', 's_branch')): d.setdefault(x.ops[0], []).append(k)
            return d
        bs = branch_srcs()
        while i < len(self.ins):
            c = self.ins[i]
            if c.op is None: i += 1; continue
            lack = 0
            stack = [(i - 1, 0)]; seen = set()
            while stack:
                j, dist = stack.pop()
                while j >= 0 and dist < 14:
                    if (j, dist) in seen: break
                    seen.add((j, dist))
                    p = self.ins[j]
                    if p.label:
                        for k in bs.get(p.label, []): stack.append((k, dist))
                        jj = j - 1
                        while jj >= 0 and self.ins[jj].op is None and not self.ins[jj].label: jj -= 1
                        if jj >= 0 and self.ins[jj].op in ('s_branch', 's_endpgm'): break
                        j -= 1; continue
                    if p.op is None: j -= 1; continue
                    lack = max(lack, need(p, c) - dist)
                    dist += p.ws(); j -= 1
            if lack > 0:
                self.ins.insert(i, Ins(f's_nop {lack-1}')); added += 1
                bs = branch_srcs(); i += 1
            i += 1
        return added
    def text(self):
        out = []
        for x in self.ins:
            out.append(x.text if (x.label or x.directive) else '    ' + x.text)
        return '\n'.join(out) + '\n'

def check_waitcnt(asm, verbose=True):
    ins = asm.ins
    labels = {x.label: i for i, x in enumerate(ins) if x.label}
    seen = set(); problems = {}
    stack = [(0, (), ())]
    steps = 0
    while stack:
        pc, vm, lg = stack.pop()
        while pc < len(ins):
            x = ins[pc]
            if x.label:
                while vm and not vm[0]: vm = vm[1:]
                while lg and not lg[0][0] and not lg[0][1]: lg = lg[1:]
                key = (pc, vm, lg)
                if key in seen: break
                seen.add(key)
            if x.op is None: pc += 1; continue
            steps += 1
            if steps > 5000000: raise Exception("too many steps")
            touched = x.rd | x.wr
            for d in vm:
                if d & touched and not (x.vmem and d & x.wr and not d & x.rd and False): problems[pc] = ('vm', d & touched)
            for d, sm in lg:
                if d & touched and not (x.ds and not sm and not (d & x.rd)): problems[pc] = ('lgkm', d & touched)
            if x.op == 's_waitcnt':
                t = x.text
                m = re.search(r'vmcnt\((\d+)\)', t)
                if m:
                    n = int(m.group(1)); vm = vm[len(vm)-n:] if n < len(vm) else vm
                    if n == 0: vm = ()
                m = re.search(r'lgkmcnt\((\d+)\)', t)
                if m:
                    n = int(m.group(1))
                    if n == 0: lg = ()
                    elif not any(sm for _, sm in lg): lg = lg[len(lg)-n:] if n < len(lg) else lg
            elif x.vmem: vm = vm + (frozenset(x.wr),)
            elif x.ds: lg = lg + ((frozenset(x.wr), False),)
            elif x.op.startswith(('s_load', 's_memtime', 's_memrealtime')): lg = lg + ((frozenset(x.wr), True),)
            if x.op == 's_endpgm': break
            if x.op == 's_branch': pc = labels[x.ops[0]]; continue
            if x.op.startswith('s_cbranch'): stack.append((labels[x.ops[0]], vm, lg))
            pc += 1
    for pc, p in sorted(problems.items()):
        print("WAITCNT?", pc, ins[pc].text, p)
    return problems

def sizes(asm):
    import subprocess, tempfile, os
    src = '.amdgcn_target "amdgcn-amd-amdhsa--gfx950"\n.text\n' + asm.text() + 'L_table:\n'
    d = tempfile.mkdtemp(); open(d+'/a.s', 'w').write(src)
    r = subprocess.run(['clang', '-x', 'assembler', '-target', 'amdgcn-amd-amdhsa', '-mcpu=gfx950', '-c', d+'/a.s', '-o', d+'/a.o'], capture_output=True, text=True)
    if r.returncode: print(r.stderr[:3000]); raise SystemExit(1)
    o = subprocess.run(['llvm-objdump', '-d', '--mcpu=gfx950', d+'/a.o'], capture_output=True, text=True).stdout
    sz = []
    for l in o.splitlines():
        m = re.search(r'//\s*([0-9A-F]{12}):((?: [0-9A-F]{8})+)', l)
        if m: sz.append(4*len(m.group(2).split()))
    real = [x for x in asm.ins if x.op]
    assert len(sz) == len(real), (len(sz), len(real))
    for x, s in zip(real, sz): x.size = s

def align_pass(asm, minrun=4):
    sizes(asm)
    real = [x for x in asm.ins if x.op]
    off = 0; fixes = 0; i = 0
    while i < len(real):
        x = real[i]
        if x.size == 8 and off % 8 == 4:
            j = i
            while j < len(real) and real[j].size == 8: j += 1
            nv = sum(1 for y in real[i:j] if not y.mfma)
            if sum(1 for y in real[i:j] if y.mfma)*3 > j-i: nv = 0
            if nv >= minrun:
                k = i - 1
                while k >= 0 and real[k].size == 4:
                    y = real[k]
                    if y.valu and not y.op.startswith(('v_readfirstlane', 'v_permlane', 'v_nop', 'v_cmp')) and not y.op.endswith('_e64'):
                        y.text = y.text.replace(y.op, y.op + '_e64', 1); y.size = 8; off += 4; fixes += 1
                        break
                    k -= 1
                else:
                    if nv >= 8:
                        idx = asm.ins.index(x); n = Ins('s_nop 0'); n.size = 4
                        asm.ins.insert(idx, n); off += 4; fixes += 1
            off += 8*(j-i); i = j; continue
        off += x.size; i += 1
    return fixes
```

```python
import sys, struct
from asmlib import Asm, check_waitcnt, align_pass

NAME = "sequential_preLN__ssm_conv_s4__moe_arch_mod__prompt"
STAMPS = "--stamps" in sys.argv
def opt(name, default):
    for x in sys.argv:
        if x.startswith("--"+name+"="): return int(x.split("=")[1])
    return default
NPRE = opt("npre", 8)
NFL  = opt("nfl", 14)
XDEL = opt("xdel", 40)
PACE2 = opt("pace2", 2); PACE3 = opt("pace3", 1); PACE4 = opt("pace4", 1)
NEAR = opt("near", 1); WIN = opt("win", 15); W2 = opt("w2", 1)

WS_S3  = 0x200000
WS_F5  = 0x210000
WS_P4  = 0x220000
WS_POL = 0x260000
WS_PRB = 0x264000
WS_R3  = 0x300000
WS_U1  = 0x400000; U_G, U_P = 256*896, 896
WS_Y2  = 0x600000; Y_G, Y_P = 224*1152, 1152
WS_DBG = 0x800000
C_XT, C_T, C_YT, C_ST, C_SG, C_PUB, M_TAG, M_KEY, C_F, C_U, C_T2, C_X = 0, 4, 12, 16, 20, 24, 28, 32, 48, 320, 324, 332
M_GU = 64; M_ZERO = 192; M_XS = 384
L_T = 1408; T_CH = 25*256
TR_ROW = 272; TR_W = 53*TR_ROW
L_TR = L_T + 2*T_CH
M0X = 50688
KC_ROW = 288
L_U  = L_TR + 8*TR_W; U_CH = 4288
L_XT = L_U + 2*U_CH; XT_ROW = 912
LDS_SIZE = L_XT + 8*XT_ROW + 128
L_ST = L_T; WG_ROW = 272; WD_ROW = 912
assert L_ST + 448*WG_ROW <= L_XT and L_U % 128 == 0 and L_TR % 16 == 0
assert L_TR + 7*TR_W - M0X < 65536 and M0X + 52*TR_ROW < 65536
SPIN = 0x40000

def f2u(x): return struct.unpack("<I", struct.pack("<f", x))[0]
def v(i, n=1): return f"v{i}" if n == 1 else f"v[{i}:{i+n-1}]"
def lines(t): return [x for x in t.strip().split("\n") if x.strip()]

a = Asm()
sX, sAR, sAI, sBR, sBI, sCR, sCI, sLD = [f"s[{4+2*i}:{5+2*i}]" for i in range(8)]
sDK, sPFB, sWR, sWG, sWU, sWD, sOUT, sDBG = [f"s[{20+2*i}:{21+2*i}]" for i in range(8)]
sWS = "s[36:37]"
sXG, sRANK, sQ, sP, sW, sTAG = "s38", "s39", "s40", "s41", "s42", "s43"
sPC = "s[44:45]"; sE56 = "s[46:47]"; sE28 = "s[48:49]"
sCW = "s50"; sNPF = "s51"; sNEAR = "s51"; sM2 = "s52"; sIDX = "s52"; sLDT = "s53"
sCNT = "s54"; sT0, sT1, sT2, sT3 = "s55", "s56", "s57", "s58"; sKEY = "s59"
sC2 = "s[92:93]"; sSEL0, sSEL1 = "s94", "s95"
vLANE = 1; vZ = 11; vONE = 16; vL16 = 18; vTAG = 19; vPAR = 216
DM = "row_mask:0xf bank_mask:0xf"
TAILS = []

STSET = [x[5:].split(',') for x in sys.argv if x.startswith('--st=')]
STSET = set(int(t) for t in STSET[0]) if STSET else None
JIT = opt("jitter", 0); jn = [0]
def stamp(i):
    if JIT:
        jn[0] += 1
        a(f"""
s_cselect_b32 s87, 1, 0
s_memtime s[88:89]
s_waitcnt lgkmcnt(0)
s_mul_i32 s88, s88, 0x9e3779b1
s_lshr_b32 s89, s88, 29
s_bfe_u32 s88, s88, {hex((JIT << 16) | 12)}
s_cmp_lt_u32 s89, 3
s_cselect_b32 s88, s88, 0
L_jit{jn[0]}:
s_sub_u32 s88, s88, 1
s_cbranch_scc0 L_jit{jn[0]}
s_cmp_lg_u32 s87, 0
""")
        return
    if STSET is not None and i not in STSET and i != 12: return
    if STAMPS: a(f"s_memrealtime s[88:89]\ns_memtime s[90:91]\ns_waitcnt lgkmcnt(0)\ns_mov_b32 s{62+i}, s88\ns_mov_b32 s{75+i}, s90")
def stamp0():
    if STAMPS:
        a("s_mov_b32 s62, s88\ns_mov_b32 s75, s90")
        for i in range(1, 7): a(f"s_mov_b64 s[{62+2*i}:{63+2*i}], 0" if i < 6 else "s_mov_b32 s63, 0\ns_mov_b32 s74, 0")
def emit(lst):
    for x in lst: a(x)
def unpack(dst, src, n):
    out = []
    for i in range(n):
        out.append(f"v_lshlrev_b32 {v(dst+2*i)}, 16, {v(src+i)}")
        out.append(f"v_and_b32 {v(dst+2*i+1)}, 0xffff0000, {v(src+i)}")
    return out
def unpack_add(dst, src, n, c, neg=False):
    m = " neg_lo:[0,0,1]" if neg else ""
    out = []
    for i in range(n):
        out.append(f"v_dot2_f32_bf16 {v(dst+2*i)}, {v(src+i)}, {sSEL0}, {v(c(2*i))}{m}")
        out.append(f"v_dot2_f32_bf16 {v(dst+2*i+1)}, {v(src+i)}, {sSEL1}, {v(c(2*i+1))}{m}")
    return out
def arrive(off, base=vZ):
    a(f"s_mov_b64 exec, 1\nds_add_u32 {v(base)}, {v(vONE)} offset:{off}\ns_mov_b64 exec, -1")
def spin(name, off, n, tmp, reads=(), base=vZ):
    a(f"s_mov_b32 {sCNT}, 0")
    a(f"L_{name}:")
    a(f"ds_read_b32 {v(tmp)}, {v(base)} offset:{off}")
    emit(reads)
    a(f"s_add_u32 {sCNT}, {sCNT}, 1")
    a(f"s_cmp_gt_u32 {sCNT}, {SPIN*4}")
    a("s_waitcnt lgkmcnt(0)")
    a(f"v_cmp_gt_u32 vcc, {n}, {v(tmp)}")
    a(f"s_cbranch_scc1 L_{name}_x")
    a(f"s_cbranch_vccnz L_{name}")
    a(f"L_{name}_x:")
def poll(name, loads, check, restore="-1"):
    a(f"s_mov_b32 {sCNT}, 0")
    a(f"L_{name}:")
    emit(loads)
    a(f"s_add_u32 {sCNT}, {sCNT}, 1")
    a(f"s_cmp_gt_u32 {sCNT}, {SPIN}")
    a("s_waitcnt vmcnt(0)")
    a(f"s_cbranch_scc1 L_{name}_x")
    check()
    a("s_and_b64 exec, exec, vcc")
    a(f"s_cbranch_execnz L_{name}")
    a(f"L_{name}_x:")
    a(f"s_mov_b64 exec, {restore}")
def tagcheck(regs, tmp):
    def f():
        a(f"v_xor_b32 {v(tmp)}, {v(regs[0])}, {v(vTAG)}")
        for r in regs[1:]: a(f"v_bitop3_b32 {v(tmp)}, {v(r)}, {v(vTAG)}, {v(tmp)} bitop3:0xbe")
        a(f"v_cmp_ne_u32 vcc, 0, {v(tmp)}")
    return f

z1, z2, z4, z6, z8, z256, z512, z768, z1024, t0, t1, La, Lb = [24+2*i for i in range(13)]
cv = [50, 51, 52, 53]; vAB = 58; vDT = 60; vRD = 62; vTW = 63; vTW2 = 55
FR = 64; KACC = 200
def pi_(i): return 2*((i+4) & 7) + 1 - (((i+4) >> 3) & 1)
HROW = [pi_(i) for i in range(16)] + [16+pi_(i) for i in (4, 5, 6, 12, 13)]
def LROW(j): return 21 + 16*(j >> 4) + pi_(j & 15)
def cmul(D, X, Y):
    return [f"v_pk_mul_f32 {v(D,2)}, {v(X,2)}, {v(Y,2)} op_sel:[0,0] op_sel_hi:[0,1]",
            f"v_pk_fma_f32 {v(D,2)}, {v(X,2)}, {v(Y,2)}, {v(D,2)} op_sel:[1,1,0] op_sel_hi:[1,0,1] neg_lo:[1,0,0]"]
cvi = [0]
def put(row, X, off, conj):
    c = cv[cvi[0] % 4]; cvi[0] += 1
    return [f"v_cvt_pk_bf16_f32 {v(c)}, {v(X)}, {'-' if conj else ''}{v(X+1)}", f"ds_write_addtid_b32 {v(c)} offset:{off+row*TR_ROW}"]
def kgen_dt():
    a(f"""
s_lshl_b32 {sT0}, {sLDT}, 16
s_and_b32 {sT1}, {sLDT}, 0xffff0000
s_cmp_lt_u32 {sCW}, 2
s_cselect_b32 {sT0}, {sT0}, {sT1}
v_mul_f32 v56, {sT0}, v56
v_exp_f32 v56, v56
v_cvt_pk_bf16_f32 v56, v56, v56
v_and_b32 v56, 0xffff0000, v56
v_pk_mul_f32 {v(vDT,2)}, v[56:57], {sC2} op_sel_hi:[0,1]
v_mul_f32 v56, {hex(f2u(2.0**(68-95)))}, v56
""")
def kgen_rows(off):
    P = vPAR
    o = lines(f"""
v_pk_mul_f32 {v(vAB,2)}, {v(P,2)}, {v(vDT,2)}
v_mul_f32 {v(t0)}, {hex(f2u(256.0))}, {v(vAB)}
v_mul_f32 {v(t0+1)}, {hex(f2u(256.0))}, {v(vAB+1)}
v_fract_f32 {v(vAB+1)}, {v(vAB+1)}
v_fract_f32 {v(t0+1)}, {v(t0+1)}
v_exp_f32 {v(vAB)}, {v(vAB)}
v_cos_f32 {v(z1)}, {v(vAB+1)}
v_sin_f32 {v(z1+1)}, {v(vAB+1)}
v_exp_f32 {v(t0)}, {v(t0)}
v_cos_f32 {v(z256)}, {v(t0+1)}
v_sin_f32 {v(z256+1)}, {v(t0+1)}
v_pk_mul_f32 {v(z1,2)}, {v(z1,2)}, {v(vAB,2)} op_sel_hi:[1,0]
""")
    rows = [([], 1, z1), ([f"v_pk_mul_f32 {v(z256,2)}, {v(z256,2)}, {v(t0,2)} op_sel_hi:[1,0]"], 8, z256),
            (cmul(z2, z1, z1), 2, z2), (cmul(z4, z2, z2), 4, z4), (cmul(z6, z4, z2), 6, z6),
            (cmul(t0, z2, z1), 3, t0), (cmul(t0, z4, z1), 5, t0), (cmul(t0, z6, z1), 7, t0),
            (cmul(t0, z256, z2), 9, t0), (cmul(t0, z256, z4), 10, t0), (cmul(t0, z256, z6), 11, t0),
            (cmul(z512, z256, z256), 12, z512), (cmul(t0, z512, z4), 13, t0), (cmul(z768, z512, z256), 14, z768), (cmul(t0, z768, z4), 15, t0),
            (cmul(z1024, z512, z512), 16, z1024), (cmul(t0, z1024, z256), 17, t0), (cmul(t0, z1024, z512), 18, t0),
            (cmul(t0, z1024, z768), 19, t0), (cmul(t0, z1024, z1024), 20, t0)]
    for ops, h, X in rows: o += ops + put(HROW[h], X, off, False)
    o += cmul(La, P+2, P+4) + [f"v_pk_mul_f32 {v(La,2)}, {v(La,2)}, v[56:57] op_sel_hi:[1,0]"] + put(LROW(0), La, off, True) + cmul(z8, z4, z4)
    cur, nxt = La, Lb
    for j in range(1, 32):
        o += cmul(nxt, cur, z8) + put(LROW(j), nxt, off, True); cur, nxt = nxt, cur
    return o
def cut(rows, n):
    k = 0
    for i, x in enumerate(rows):
        if x.startswith("ds_"):
            k += 1
            if k == n: return i+1
TBASE = [0, 16, 21, 37]
def kread(t, s): return f"ds_read_b128 {v(FR+16*t+4*s,4)}, {v(vRD)} offset:{TBASE[t]*TR_ROW+16*(s&1)+128*(s>>1)}"
def kmfma(h, l, s, first=False):
    d = v(KACC+8*l+4*h, 4)
    return f"v_mfma_f32_16x16x32_bf16 {d}, {v(FR+16*h+4*s,4)}, {v(FR+32+16*l+4*s,4)}, {'0' if first else d}"
def twrite(h, l):
    return [f"ds_write_b32 {v(vTW2 if h else vTW)}, {v(KACC+8*l+4*h+r)} offset:{L_T+256*r+128*l}" for r in range(3 if h else 4)]
def gran(base, GV, kmap, vKW, off):
    for r in range(4):
        for i in range(4):
            a(f"v_cvt_pk_bf16_f32 {v(base+4*r+i)}, {v(GV+2*kmap[7+r-2*i])}, {v(GV+2*kmap[6+r-2*i])}")
        a(f"ds_write_b128 {v(vKW)}, {v(base+4*r,4)} offset:{64*r+off}")
def ploads():
    for i, sb in enumerate((sAR, sAI, sBR, sBI, sCR, sCI)):
        a(f"global_load_short_d16_hi {v(vPAR+i)}, v12, {sb}")
    a(f"s_load_dword {sLDT}, {sLD}, {sT3}")

if STAMPS: a("s_memrealtime s[88:89]\ns_memtime s[90:91]")
a(f"""
s_load_dwordx16 s[4:19], s[0:1], 0
s_load_dwordx2 s[36:37], s[0:1], 128
s_load_dwordx16 s[20:35], s[0:1], 64
s_getpc_b64 {sPC}
L_pc:
s_cmp_ge_u32 s2, 256
s_cbranch_scc1 L_end
v_readfirstlane_b32 {sW}, v0
s_lshr_b32 {sRANK}, s2, 3
s_and_b32 {sXG}, s2, 7
v_and_b32 {v(vLANE)}, 63, v0
s_lshr_b32 {sW}, {sW}, 6
s_cbranch_scc1 L_nopf
s_and_b32 {sT0}, {sRANK}, 7
s_lshl_b32 {sT0}, {sT0}, 12
v_lshl_add_u32 v21, v0, 7, {sT0}
v_min_u32 v21, L_table+8188-L_pc, v21
s_mov_b32 exec_hi, 0
global_load_dword v255, v21, {sPC}
s_mov_b32 exec_hi, -1
L_nopf:
s_cmp_lt_u32 {sRANK}, 28
s_cselect_b32 {sT0}, 28, 4
s_cselect_b32 {sT1}, 0, 28
s_cselect_b32 {sQ}, 32, 0
s_mul_i32 {sP}, {sXG}, {sT0}
v_mov_b32 {v(vZ)}, 0
s_add_u32 {sP}, {sP}, {sRANK}
v_lshlrev_b32 {v(vL16)}, 4, {v(vLANE)}
s_sub_u32 {sP}, {sP}, {sT1}
v_mov_b32 {v(vONE)}, 1
s_and_b32 {sCW}, {sW}, 3
s_lshl_b32 {sT3}, {sP}, 2
s_add_u32 {sT0}, {sT3}, {sCW}
s_lshl_b32 {sT0}, {sT0}, 8
v_lshl_add_u32 v12, {v(vLANE)}, 1, {sT0}
s_mul_i32 {sT2}, {sCW}, {TR_W}
v_mov_b32 v22, 0x3f80
v_mov_b32 v56, {hex(f2u(1.4426950408889634))}
s_mov_b32 s92, {hex(f2u(1.4426950408889634))}
s_mov_b32 s93, {hex(f2u(0.15915494309189535))}
s_lshl_b32 {sT1}, {sCW}, 11
s_add_u32 {sT1}, {sT1}, L_table-L_pc
v_add_u32 v14, {sT1}, {v(vL16)}
s_cmp_lt_u32 {sW}, 4
s_cbranch_scc0 L_I
""")
vKW, vA, vB, vPB, vKP, vCT, vCF = 12, 13, 17, 15, 23, 20, 21
GA = 136; vTAB = 224
a(f"""
v_mov_b32 v8, 0
v_mov_b32 v9, 0
v_mov_b32 v10, 0
s_mul_i32 {sT0}, {sW}, {U_CH}
s_add_u32 {sT0}, {sT0}, {L_U-U_CH}
s_cmp_eq_u32 {sW}, 0
s_cselect_b32 {sT0}, 0, {sT0}
v_add_u32 v24, {sT0}, {v(vL16)}
s_add_u32 m0, {sT2}, {L_TR}
s_mov_b64 exec, 0xffffff
ds_write_b128 v24, v[8:11]
s_mov_b64 exec, -1
ds_write_addtid_b32 v22 offset:{HROW[0]*TR_ROW}
v_add_u32 v24, 4, {v(vLANE)}
v_and_b32 v25, 7, v24
v_bfe_u32 v24, v24, 3, 1
v_lshlrev_b32 v25, 1, v25
v_sub_u32 v24, v25, v24
v_add_u32 v24, 1, v24
v_mul_u32_u24 {v(vRD)}, {TR_ROW}, v24
v_lshrrev_b32 v25, 4, {v(vLANE)}
v_lshl_add_u32 {v(vRD)}, v25, 5, {v(vRD)}
v_add_u32 {v(vRD)}, m0, {v(vRD)}
v_add_u32 {v(vKP)}, m0, {v(vL16)}
s_waitcnt lgkmcnt(0)
""")
ploads()
stamp0()
a(f"""
s_barrier
s_cmp_ge_u32 {sRANK}, 28
s_cbranch_scc1 L_C_spare
s_lshr_b32 {sT1}, {sW}, 1
s_and_b32 {sT2}, {sW}, 1
s_mul_i32 {sT0}, {sT1}, {T_CH}
s_lshl_b32 {sT3}, {sT2}, 2
s_add_u32 {sT0}, {sT0}, {sT3}
v_and_b32 v26, 15, {v(vLANE)}
v_lshl_add_u32 v24, v26, 3, {sT0}
v_lshl_add_u32 {v(vTW)}, v25, 10, v24
v_add_u32 {v(vTW2)}, {22*256}, v24
s_mov_b32 exec_lo, 0xffff0000
s_mov_b32 exec_hi, 0
v_add_u32 {v(vTW2)}, {16*256}, v24
s_mov_b32 exec_lo, 0
s_mov_b32 exec_hi, 0xffff0000
v_add_u32 {v(vTW2)}, {19*256}, v24
s_mov_b64 exec, -1
s_lshl_b32 {sT0}, {sT1}, 2
v_mov_b32 {v(vCT)}, {sT0}
s_lshl_b32 {sT0}, {sW}, 2
v_mov_b32 {v(vCF)}, {sT0}
v_bfe_u32 v24, {v(vLANE)}, 2, 2
v_mul_u32_u24 {v(vA)}, {KC_ROW}, v24
v_and_b32 v24, 3, {v(vLANE)}
v_lshl_add_u32 {v(vA)}, v24, 6, {v(vA)}
v_and_b32 v25, 0x30, {v(vLANE)}
v_add3_u32 {v(vA)}, {v(vA)}, v25, m0
s_mul_i32 {sT3}, {sT1}, {U_CH}
s_lshl_b32 {sT2}, {sT2}, 6
s_add_u32 {sT3}, {sT3}, {sT2}
s_add_u32 {sT3}, {sT3}, {L_U + 128 - 120}
v_lshlrev_b32 {v(vB)}, 3, v26
v_add3_u32 {v(vB)}, {v(vB)}, v25, {sT3}
v_add_u32 {v(vPB)}, {4*TR_W}, {v(vKP)}
s_branch L_C
""")
vX = 2; vOA = 10; vSA = 15; vEP = 17
UF = 64; Y = 64; UP = 80; TRO = 88; T1 = 96; G = 96; SL = 108; T2 = 116; vYS = 126
ZD = 128; vMD = 144; vRI = 146; vPV = 148; vSW = 149; WF = 150
vXW, vTRA, vIF, vPF, vDA, vUW, vYA, vFL, vSB, vKL, vL28 = 166, 167, 168, 169, 170, 172, 173, 176, 177, 178, 179
UD = 180; vRA, vSA3, vFA5, vRA2 = 188, 189, 190, 191; PAT = 196; vYW = 200; DW = 224; vTB2 = 240
addr = lines(f"""
v_add_u32 v12, 128, v12
s_add_u32 {sQ}, {sQ}, {sP}
s_add_u32 m0, {sT2}, {L_TR+4*TR_W-M0X}
v_bfe_u32 v20, v0, 5, 3
s_lshl_b32 {sT0}, {sQ}, 3
v_add_u32 v23, {sT0}, v20
ds_write_addtid_b32 v22 offset:{M0X+HROW[0]*TR_ROW}
v_sub_u32 {v(vKL)}, 2047, v23
v_mul_u32_u24 v23, 896, v23
v_and_b32 {v(vL28)}, 0x1f0, {v(vL16)}
v_add_u32 {v(vOA)}, {v(vL28)}, v23
s_mov_b32 s46, -1
s_mov_b32 s47, 0xffffff
s_mov_b32 s48, 0xfffffff
s_mov_b32 s49, 0xfffffff
v_mul_u32_u24 {v(vXW)}, {XT_ROW}, v20
s_mov_b32 {sT1}, {L_XT}
v_add3_u32 {v(vXW)}, {v(vXW)}, {v(vL28)}, {sT1}
v_bfe_u32 v24, {v(vLANE)}, 2, 2
v_mul_u32_u24 {v(vTRA)}, {XT_ROW}, v24
v_lshrrev_b32 v24, 4, {v(vLANE)}
v_lshl_add_u32 {v(vTRA)}, v24, 5, {v(vTRA)}
v_and_b32 v24, 3, {v(vLANE)}
v_lshlrev_b32 v24, 3, v24
s_mul_i32 {sT0}, {sCW}, 224
s_add_u32 {sT0}, {sT0}, {L_XT}
v_add3_u32 {v(vTRA)}, {v(vTRA)}, v24, {sT0}
v_lshrrev_b32 v24, 1, {v(vLANE)}
v_and_b32 v25, 1, {v(vLANE)}
v_mul_u32_u24 {v(vYW)}, {4*XT_ROW}, v25
v_lshlrev_b32 v26, 2, v24
v_add3_u32 {v(vYW)}, {v(vYW)}, v26, {sT0}
---
v_add_u32 {v(vYW+1)}, {XT_ROW}, {v(vYW)}
v_add_u32 {v(vYW+2)}, {2*XT_ROW}, {v(vYW)}
v_add_u32 {v(vYW+3)}, {3*XT_ROW}, {v(vYW)}
s_mov_b32 {sSEL0}, 0x3f80
s_mov_b32 {sSEL1}, 0x3f800000
s_mul_i32 {sT0}, {sQ}, {U_P}
s_mul_i32 {sT2}, {sCW}, {2*U_G}
s_add_u32 {sT0}, {sT0}, {sT2}
s_add_u32 {sT0}, {sT0}, {WS_U1}
v_add_u32 {v(vSA)}, {sT0}, {v(vL16)}
v_add_u32 {v(vSB)}, {U_G}, {v(vSA)}
s_lshl_b32 {sT1}, {sRANK}, 5
v_lshl_add_u32 v26, v25, 4, {sT1}
s_mul_i32 {sT0}, {sCW}, {64*U_P}
s_mul_i32 {sT2}, {sXG}, {U_G}
s_add_u32 {sT0}, {sT0}, {sT2}
s_add_u32 {sT0}, {sT0}, {WS_U1}
v_mul_u32_u24 {v(vDA)}, {U_P}, v24
v_add3_u32 {v(vDA)}, {v(vDA)}, v26, {sT0}
v_add_u32 {v(vDA+1)}, {32*U_P}, {v(vDA)}
s_and_b32 {sT1}, {sQ}, 31
s_lshl_b32 {sT1}, {sT1}, 5
v_lshl_add_u32 v26, v25, 4, {sT1}
s_mul_i32 {sT0}, {sCW}, {56*Y_P}
s_lshr_b32 {sT2}, {sQ}, 5
s_mul_i32 {sT2}, {sT2}, {Y_G}
s_add_u32 {sT0}, {sT0}, {sT2}
s_add_u32 {sT0}, {sT0}, {WS_Y2}
v_mul_u32_u24 {v(vYA)}, {Y_P}, v24
v_add3_u32 {v(vYA)}, {v(vYA)}, v26, {sT0}
v_add_u32 {v(vYA+1)}, {28*Y_P}, {v(vYA)}
v_mul_u32_u24 {v(vUW)}, {U_CH}, v25
v_lshlrev_b32 v24, 4, v24
s_lshl_b32 {sT0}, {sCW}, 10
s_add_u32 {sT1}, {sT0}, {L_U+128}
v_add3_u32 {v(vUW)}, {v(vUW)}, v24, {sT1}
s_add_u32 {sT0}, {sT0}, {L_TR+4*TR_W}
v_add_u32 {v(vEP)}, {sT0}, {v(vL16)}
s_lshl_b32 {sT0}, {sCW}, 2
v_mov_b32 {v(vIF)}, {sT0}
v_mov_b32 {v(T1+4)}, 0
v_mov_b32 {v(T1+5)}, 0
s_mul_i32 {sT0}, {sCW}, {Y_G}
s_mul_i32 {sT1}, {sP}, {Y_P}
s_add_u32 {sT0}, {sT0}, {sT1}
s_add_u32 {sT0}, {sT0}, {WS_Y2}
v_add_u32 {v(vYS)}, {sT0}, {v(vL16)}
v_add_u32 {v(vYS+1)}, {4*Y_G}, {v(vYS)}
v_lshlrev_b32 v13, 3, v25
s_mov_b32 {sM2}, 0x60006000
""")
k0 = addr.index("---"); pre, post = addr[:k0], addr[k0+1:]
a("L_I:")
emit(pre)
a(f"""
s_setprio 2
s_waitcnt lgkmcnt(0)
""")
ploads()
stamp0()
a("s_barrier")
emit(post[:XDEL])
a(f"""
s_mov_b64 exec, {sE28}
global_load_dwordx4 {v(vX,4)}, {v(vOA)}, {sX}
global_load_dwordx4 {v(vX+4,4)}, {v(vOA)}, {sX} offset:448
global_load_short_d16_hi {v(vPV)}, v23, {sX}
s_mov_b64 exec, -1
""")
emit(post[XDEL:])
a(f"s_waitcnt lgkmcnt(0)\ns_load_dword {sTAG}, {sWS}, 0{' glc' if opt('glc', 0) else ''}")
kgen_dt()
a(f"""
s_cmp_ge_u32 {sRANK}, 28
s_cbranch_scc1 L_I_ln1
s_waitcnt vmcnt(3)
""")
stamp(11)
rowsI = kgen_rows(M0X)
c1 = cut(rowsI, NPRE)
emit(rowsI[:c1])
a(f"""
L_I_ln1:
global_load_dwordx4 {v(vTB2,4)}, v14, {sPC} offset:1024
s_waitcnt lgkmcnt(0)
s_mul_i32 {sTAG}, {sTAG}, 1664525
s_add_u32 {sTAG}, {sTAG}, 1013904223
v_mov_b32 {v(vTAG)}, {sTAG}
v_lshrrev_b32 v13, v13, {v(vTAG)}
""")
for i in range(4): a(f"v_lshlrev_b32 {v(PAT+i)}, {13-2*i}, v13")
for i in range(4): a(f"v_and_b32 {v(PAT+i)}, {sM2}, {v(PAT+i)}")
a(f"s_mov_b64 exec, {sE28}\ns_waitcnt vmcnt(1)")
stamp(1)
def sums(D, T, W=None):
    S1, S2, S3 = T+4, T+5, T+8
    a(f"v_pk_add_f32 {v(T,2)}, {v(D,2)}, {v(D+2,2)}")
    a(f"v_pk_mul_f32 {v(T+2,2)}, {v(D,2)}, {v(D,2)}")
    if W: a(f"v_pk_mul_f32 {v(T+6,2)}, {v(D,2)}, {v(W,2)}")
    for i in range(1, 8):
        if i > 1: a(f"v_pk_add_f32 {v(T,2)}, {v(T,2)}, {v(D+2*i,2)}")
        a(f"v_pk_fma_f32 {v(T+2,2)}, {v(D+2*i,2)}, {v(D+2*i,2)}, {v(T+2,2)}")
        if W: a(f"v_pk_fma_f32 {v(T+6,2)}, {v(D+2*i,2)}, {v(W+2*i,2)}, {v(T+6,2)}")
    a(f"v_add_f32 {v(S1)}, {v(T)}, {v(T+1)}")
    a(f"v_add_f32 {v(S2)}, {v(T+2)}, {v(T+3)}")
    if W: a(f"v_add_f32 {v(S3)}, {v(T+6)}, {v(T+7)}")
    a("s_mov_b64 exec, -1")
    for st in (8, 4, 2, 1):
        for r in ([S1, S2, S3] if W else [S1, S2]): a(f"v_add_f32_dpp {v(r)}, {v(r)}, {v(r)} row_ror:{st} {DM}")
INV = hex(f2u(1.0/448)); EPS = hex(f2u(1e-5))
emit(unpack_add(ZD, vX, 8, lambda i: vPV, neg=True))
sums(ZD, T1)
a(f"""
v_mov_b32 {v(T1)}, {v(T1+4)}
v_mov_b32 {v(T1+1)}, {v(T1+5)}
v_permlane16_swap_b32 {v(T1)}, {v(T1+4)}
v_permlane16_swap_b32 {v(T1+1)}, {v(T1+5)}
v_pk_add_f32 {v(T1,2)}, {v(T1,2)}, {v(T1+4,2)}
v_mul_f32 {v(vMD)}, {INV}, {v(T1)}
v_mul_f32 {v(T1+1)}, {INV}, {v(T1+1)}
v_fma_f32 {v(T1+1)}, -{v(vMD)}, {v(vMD)}, {v(T1+1)}
v_max_f32 {v(T1+1)}, 0, {v(T1+1)}
v_add_f32 {v(T1+1)}, {EPS}, {v(T1+1)}
v_rsq_f32 {v(vRI)}, {v(T1+1)}
s_mov_b64 exec, {sE28}
v_mul_f32 {v(T1+2)}, {hex(f2u(2.0**-68))}, {v(vRI)}
v_mul_f32 {v(T1)}, {v(vMD)}, {v(T1+2)}
""")
for i in range(8):
    a(f"v_pk_fma_f32 {v(UF+2*i,2)}, {v(ZD+2*i,2)}, {v(T1+2,2)}, {v(T1,2)} op_sel_hi:[1,0,0] neg_lo:[0,0,1] neg_hi:[0,0,1]")
for i in range(8):
    a(f"v_cvt_pk_bf16_f32 {v(UP+i)}, {v(UF+2*i)}, {v(UF+1+2*i)}")
a(f"ds_write_b128 {v(vXW)}, {v(UP,4)}\nds_write_b128 {v(vXW)}, {v(UP+4,4)} offset:448")
arrive(C_XT)
spin("sxt", C_XT, 4, UF, [f"ds_read_b64_tr_b16 {v(TRO,2)}, {v(vTRA)}", f"ds_read_b64_tr_b16 {v(TRO+2,2)}, {v(vTRA)} offset:{4*XT_ROW}",
                          f"ds_read_b64_tr_b16 {v(TRO+4,2)}, {v(vTRA)} offset:112", f"ds_read_b64_tr_b16 {v(TRO+6,2)}, {v(vTRA)} offset:{4*XT_ROW+112}"])
data_loads = [f"global_load_dwordx4 {v(UD,4)}, {v(vDA)}, {sWS} sc1", f"global_load_dwordx4 {v(UD+4,4)}, {v(vDA+1)}, {sWS} sc1"]
y_loads = [f"global_load_dwordx4 {v(Y,4)}, {v(vYA)}, {sWS} sc1", f"global_load_dwordx4 {v(Y+4,4)}, {v(vYA+1)}, {sWS} sc1"]
a(f"s_mov_b64 exec, {sE56}")
for i in range(8): a(f"v_bfi_b32 {v(TRO+i)}, {sM2}, {v(PAT+i%4)}, {v(TRO+i)}")
a(f"""
global_store_dwordx4 {v(vSA)}, {v(TRO,4)}, {sWS} sc1
global_store_dwordx4 {v(vSB)}, {v(TRO+4,4)}, {sWS} sc1
s_mov_b64 exec, -1
""")
stamp(2)
a(f"s_cmp_ge_u32 {sRANK}, 28\ns_cbranch_scc1 L_I_spare")
cF = cut(rowsI, 36); cL = cut(rowsI, 52-NFL)
pos = c1
for c, act in sorted([(cF, 0), (cL, 1)]):
    emit(rowsI[pos:c]); pos = c
    if act == 0: arrive(C_F, vIF)
    else: emit(data_loads)
emit(rowsI[pos:])
arrive(C_F, vIF)
stamp(10)
late_addr = lines(f"""
s_lshr_b32 {sT0}, {sQ}, 2
s_lshl_b32 {sT0}, {sT0}, 14
s_and_b32 {sT1}, {sQ}, 3
s_lshl_b32 {sT1}, {sT1}, 11
s_add_u32 {sT0}, {sT0}, {sT1}
s_add_u32 {sT0}, {sT0}, {WS_R3}
v_add_u32 {v(vRA)}, {sT0}, {v(vL28)}
v_add_u32 {v(vRA2)}, 0x2000, {v(vRA)}
s_lshr_b32 {sT0}, {sQ}, 6
s_lshl_b32 {sT0}, {sT0}, 13
s_lshl_b32 {sT1}, {sQ}, 7
s_add_u32 {sT0}, {sT0}, {sT1}
s_add_u32 {sT0}, {sT0}, {WS_S3}
v_and_b32 v24, 8, {v(vLANE)}
v_mul_u32_u24 v24, {(8192-128)//8}, v24
v_add3_u32 {v(vSA3)}, v24, {v(vL16)}, {sT0}
v_add_u32 {v(vFA5)}, {WS_F5-WS_S3}, {v(vSA3)}
""")
a("s_setprio 0")
emit(late_addr)
a(f"""
v_lshrrev_b32 {v(vPF)}, 2, {v(vLANE)}
s_cmp_lt_u32 {sCW}, 2
s_cselect_b32 {sT2}, {3584-512}, 0
v_mul_u32_u24 {v(vPF)}, {sT2}, {v(vPF)}
v_lshl_add_u32 {v(vPF)}, {v(vLANE)}, 7, {v(vPF)}
s_mul_i32 {sT0}, {sRANK}, {16*3584}
s_lshl_b32 {sT1}, {sXG}, 9
s_add_u32 {sT0}, {sT0}, {sT1}
s_lshl_b32 {sT1}, {sP}, 13
s_cmp_lt_u32 {sCW}, 2
s_cselect_b32 {sT0}, {sT0}, {sT1}
v_add_u32 {v(vPF)}, {sT0}, {v(vPF)}
s_cmp_eq_u32 {sCW}, 1
s_cselect_b64 {sPFB}, {sWU}, {sWD}
s_cmp_eq_u32 {sCW}, 0
s_cselect_b64 {sPFB}, {sWG}, {sPFB}
s_add_u32 {sT0}, {sCW}, 4
s_max_u32 {sNPF}, {sT0}, {sXG}
s_setprio 2
""")
def ucheck(joint, R):
    def f():
        for i in range(8): a(f"v_xor_b32 {v(R+i)}, {v(R+i)}, {v(PAT+i%4)}")
        a(f"""
v_or3_b32 {v(vFL)}, {v(R)}, {v(R+1)}, {v(R+2)}
v_or3_b32 v13, {v(R+3)}, {v(R+4)}, {v(R+5)}
v_or3_b32 {v(vFL)}, {v(vFL)}, {v(R+6)}, {v(R+7)}
v_bitop3_b32 {v(vFL)}, {v(vFL)}, v13, {sM2} bitop3:0xa8
v_cmp_ne_u32 vcc, 0, {v(vFL)}
""")
        if joint: a("s_wqm_b64 vcc, vcc")
    return f
def tagged_wait(name, loads, R, restore):
    a("s_waitcnt vmcnt(0)")
    ucheck(False, R)()
    a(f"s_cbranch_vccnz L_{name}_retry\nL_{name}_ok:")
    def tail():
        a(f"L_{name}_retry:\ns_wqm_b64 exec, vcc")
        poll(name, loads, ucheck(True, R), restore)
        a(f"s_branch L_{name}_ok")
    TAILS.append(tail)
tagged_wait("p1", data_loads, UD, "-1")
stamp(3)
a(f"ds_write_b128 {v(vUW)}, {v(UD,4)}\nds_write_b128 {v(vUW)}, {v(UD+4,4)} offset:512")
arrive(C_U)
a(f"""
s_setprio 0
v_lshrrev_b32 v40, 16, {v(vTB2+1)}
v_and_b32 v41, 0xffff, {v(vTB2+2)}
v_lshrrev_b32 v42, 16, {v(vTB2+2)}
v_and_b32 v43, 0xffff, {v(vTB2+3)}
v_lshrrev_b32 v44, 16, {v(vTB2+3)}
s_lshr_b32 {sT0}, {sCW}, 1
s_lshl_b32 {sT0}, {sT0}, 2
v_mov_b32 v45, {sT0}
""")
spin("spf", C_U, 4, 46)
a(f"""
s_cmp_eq_u32 {sNPF}, 7
s_cbranch_scc1 L_I_npf
global_load_dword v255, {v(vPF)}, {sPFB}
L_I_npf:
""")
spin("stb", C_T2, 2, 46, [f"ds_read_b64 {v(24+2*k,2)}, {v(40+k)}" for k in range(4)], base=45)
for k in range(4): a(f"v_add_f32 {v(24+2*k)}, {v(24+2*k)}, {v(25+2*k)}")
gran(68, 24, [0]+[1]*6+[2]+[3]*3, 44, 16*KC_ROW)
a(f"""
v_not_b32 v192, {v(PAT)}
global_store_dwordx4 {v(vYS)}, v[192:195], {sWS} sc1
global_store_dwordx4 {v(vYS+1)}, v[192:195], {sWS} sc1
s_branch L_I_sh
L_I_spare:
s_mov_b64 exec, 1
ds_write_b32 {v(vZ)}, {v(vTAG)} offset:{M_TAG}
""")
arrive(C_ST)
emit(late_addr)
a(f"""
L_I_sh:
s_cmp_lg_u32 {sCW}, 3
s_cbranch_scc1 L_I_nt
v_not_b32 v65, {v(vTAG)}
v_not_b32 v67, {v(vTAG)}
s_mov_b64 exec, {'0xffff' if NEAR else '0xff'}
global_store_dwordx4 {v(vSA3)}, v[64:67], {sWS} sc1
global_store_dwordx4 {v(vFA5)}, v[64:67], {sWS} sc1
L_I_nt:
s_mov_b64 exec, {sE28}
global_load_dwordx4 {v(DW,4)}, {v(vL28)}, {sDK}
global_load_dwordx4 {v(DW+4,4)}, {v(vL28)}, {sDK} offset:448
global_load_dwordx4 {v(DW+8,4)}, {v(vL28)}, {sWR}
global_load_dwordx4 {v(DW+12,4)}, {v(vL28)}, {sWR} offset:448
s_mov_b64 exec, -1
s_setprio 2
s_cmp_lt_u32 {sRANK}, 28
s_cbranch_scc1 L_I_ep
s_mov_b64 exec, 1
""")
poll("p2a", y_loads, ucheck(False, Y))
def epi(h):
    a(f"""
ds_read_b128 v[24:27], {v(vEP)} offset:{4096*h}
ds_read_b128 v[28:31], {v(vEP)} offset:{4096*h+TR_W}
ds_read_b128 v[32:35], {v(vEP)} offset:{4096*h+2*TR_W}
ds_read_b128 v[36:39], {v(vEP)} offset:{4096*h+3*TR_W}
s_waitcnt lgkmcnt(2)
v_pk_add_f32 v[24:25], v[24:25], v[28:29]
v_pk_add_f32 v[26:27], v[26:27], v[30:31]
s_waitcnt lgkmcnt(0)
v_pk_add_f32 v[32:33], v[32:33], v[36:37]
v_pk_add_f32 v[34:35], v[34:35], v[38:39]
v_cvt_pk_bf16_f32 v28, v24, v32
v_cvt_pk_bf16_f32 v29, v25, v33
v_cvt_pk_bf16_f32 v30, v26, v34
v_cvt_pk_bf16_f32 v31, v27, v35
v_bfi_b32 v28, {sM2}, {v(PAT)}, v28
v_bfi_b32 v29, {sM2}, {v(PAT+1)}, v29
v_bfi_b32 v30, {sM2}, {v(PAT+2)}, v30
v_bfi_b32 v31, {sM2}, {v(PAT+3)}, v31
global_store_dwordx4 {v(vYS+h)}, v[28:31], {sWS} sc1
""")
a("s_branch L_x2\nL_I_ep:\ns_waitcnt lgkmcnt(0)")
stamp(9)
a("s_barrier")
epi(0)
a(f"""
s_lshl_b32 {sT0}, s2, 3
s_add_u32 {sT0}, {sT0}, {sW}
s_cmp_lg_u32 {sT0}, 4
s_cbranch_scc1 L_I_ne
s_mov_b64 exec, 1
global_store_dword {v(vZ)}, {v(vTAG)}, {sWS} sc1
s_mov_b64 exec, -1
L_I_ne:
s_barrier
""")
stamp(5)
epi(1)
a(f"L_x2:\ns_waitcnt vmcnt({0 if PACE2 == 2 else 2})")
a(f"v_add_f32 {v(vPV)}, {v(vPV)}, {v(vMD)}\nv_mov_b32 {v(vSW)}, 0")
for i in range(8): a(f"v_pk_add_f32 {v(ZD+2*i,2)}, {v(ZD+2*i,2)}, {v(vMD,2)} op_sel_hi:[1,0] neg_lo:[0,1] neg_hi:[0,1]")
emit(unpack(40, DW, 8))
a(f"s_mov_b32 s60, 0x3f803f80\ns_mov_b64 exec, {sE28}")
for i in range(8): a(f"v_dot2_f32_bf16 {v(vSW)}, {v(DW+8+i)}, s60, {v(vSW)}")
a("s_mov_b64 exec, -1")
for i in range(8): a(f"v_pk_fma_f32 {v(40+2*i,2)}, {v(40+2*i,2)}, {v(vRI,2)}, 1.0 op_sel_hi:[1,0,0]")
uw = unpack(WF, DW+8, 8)
for j, st in enumerate(("row_ror:8 "+DM, "row_ror:4 "+DM, "row_ror:2 "+DM, "row_ror:1 "+DM, "row_bcast:15 row_mask:0xa bank_mask:0xf")):
    a(f"v_add_f32_dpp {v(vSW)}, {v(vSW)}, {v(vSW)} {st}"); emit(uw[2*j:2*j+2])
emit(uw[10:])
for i in range(8): a(f"v_pk_mul_f32 {v(ZD+2*i,2)}, {v(ZD+2*i,2)}, {v(40+2*i,2)}")
a(f"s_mov_b64 exec, {sE56}")
if PACE2 == 1: a("s_waitcnt vmcnt(0)")
stamp(6)
emit(y_loads)
a(f"""
s_mov_b64 exec, -1
v_mov_b32 {v(T2+4)}, 0
v_mov_b32 {v(T2+5)}, 0
v_mov_b32 {v(T2+8)}, 0
v_mov_b32 {v(G+3)}, {sTAG}
v_mov_b32 {v(G+7)}, {sTAG}
v_mov_b32 {v(G+11)}, {sTAG}
v_mov_b32 {v(SL+1)}, {sTAG}
v_mov_b32 {v(SL+3)}, {sTAG}
s_mov_b32 {sSEL0}, {hex(f2u(2.0**95) >> 16)}
s_mov_b32 {sSEL1}, {hex(f2u(2.0**95))}
s_mov_b32 s60, 0xfffff800
s_mov_b64 exec, {sE56}
""")
tagged_wait("p2", y_loads, Y, sE56)
for i in range(4): a(f"ds_write2_b32 {v(vYW+i)}, {v(Y+i)}, {v(Y+4+i)} offset1:28")
arrive(C_YT)
spin("syt", C_YT, 4, 72, [f"ds_read_b128 {v(Y,4)}, {v(vXW)}", f"ds_read_b128 {v(Y+4,4)}, {v(vXW)} offset:448"])
stamp(7)
D2 = 24
a(f"s_mov_b64 exec, {sE28}")
emit(unpack_add(D2, Y, 8, lambda i: ZD+i))
sums(D2, T2, WF)
S1, S2, S3 = T2+4, T2+5, T2+8
for r in (S1, S2, S3): a(f"v_add_f32_dpp {v(r)}, {v(r)}, {v(r)} row_bcast:15 row_mask:0xa bank_mask:0xf")
A2 = 48; A3 = 50; B2 = 52; B3 = 54
a(f"""
v_mul_f32 {v(S1)}, {INV}, {v(S1)}
v_mul_f32 {v(S2)}, {INV}, {v(S2)}
v_fma_f32 {v(S2)}, -{v(S1)}, {v(S1)}, {v(S2)}
v_fma_f32 {v(S3)}, -{v(S1)}, {v(vSW)}, {v(S3)}
v_max_f32 {v(S2)}, 0, {v(S2)}
v_add_f32 {v(S2)}, {EPS}, {v(S2)}
v_rsq_f32 {v(A2)}, {v(S2)}
v_ashrrev_i32 {v(T2)}, 31, {v(S3)}
v_mul_f32 {v(S3)}, {v(S3)}, {v(A2)}
v_or_b32 {v(T2)}, 0x80000000, {v(T2)}
v_xor_b32 {v(T2)}, {v(T2)}, {v(S3)}
v_and_or_b32 {v(T2)}, {v(T2)}, s60, {v(vKL)}
v_mul_f32 {v(A3)}, {v(S1)}, {v(A2)}
v_readlane_b32 {sT0}, {v(T2)}, 31
v_readlane_b32 {sT1}, {v(T2)}, 63
v_mov_b32 {v(T2)}, {v(A2)}
s_max_u32 {sKEY}, {sT0}, {sT1}
s_cselect_b32 {sT2}, -1, 0
s_max_u32 {sKEY}, {sKEY}, 1
v_mov_b32 {v(SL)}, {sKEY}
s_mov_b64 exec, 1
ds_write_b32 {v(vIF)}, {v(SL)} offset:{M_KEY}
s_mov_b64 exec, -1
s_mov_b32 {sCNT}, 0
L_key:
ds_read_b128 v[56:59], {v(vZ)} offset:{M_KEY}
v_mov_b32 {v(SL+2)}, {sKEY}
s_add_u32 {sCNT}, {sCNT}, 1
s_cmp_gt_u32 {sCNT}, {SPIN*4}
s_waitcnt lgkmcnt(0)
v_min3_u32 v60, v56, v57, v58
v_max3_u32 v61, v56, v57, v58
v_min_u32 v60, v60, v59
v_max_u32 v61, v61, v59
v_cmp_eq_u32 vcc, 0, v60
s_cbranch_scc1 L_key_x
s_cbranch_vccnz L_key
L_key_x:
v_cmp_ne_u32 vcc, v61, {v(SL)}
s_mov_b64 exec, {'0xffff' if NEAR else '0xff'}
s_cbranch_vccnz L_nb0
global_store_dwordx4 {v(vSA3)}, {v(SL,4)}, {sWS} sc1
L_nb0:
s_mov_b64 exec, -1
v_mov_b32 {v(T2+1)}, {v(A3)}
s_mov_b32 {sT3}, 0
v_permlane16_swap_b32 {v(T2)}, {v(A2)}
v_permlane16_swap_b32 {v(T2+1)}, {v(A3)}
s_cbranch_vccnz L_notbest
""")
if PACE3 == 0: arrive(C_PUB)
a(f"s_mov_b32 exec_lo, {sT2}\ns_not_b32 exec_hi, {sT2}")
gpos = [0, 1, 2, 4, 5, 6, 8, 9]
for i in range(8):
    a(f"v_pk_fma_f32 {v(72+2*i,2)}, {v(D2+2*i,2)}, {v(A2,2)}, {v(A3,2)} op_sel_hi:[1,0,0] neg_lo:[0,0,1] neg_hi:[0,0,1]")
for i in range(8):
    a(f"v_cvt_pk_bf16_f32 {v(G+gpos[i])}, {v(72+2*i)}, {v(73+2*i)}")
a(f"""
v_fma_f32 {v(S2)}, {v(S2)}, {v(A2)}, 1.0
v_add_f32 {v(S1)}, {v(S1)}, {v(vPV)}
s_mov_b32 s60, 0x10000
s_mov_b32 s61, 0x10000
v_cndmask_b32 {v(G+10)}, {v(S2)}, {v(S3)}, s[60:61]
s_mov_b32 s60, 0x20000
s_mov_b32 s61, 0x20000
v_cndmask_b32 {v(G+10)}, {v(G+10)}, {v(S1)}, s[60:61]
""")
for r in ([vRA, vRA2] if NEAR else [vRA]):
    for j in range(3): a(f"global_store_dwordx4 {v(r)}, {v(G+4*j,4)}, {sWS} offset:{512*j} sc1")
a(f"""
s_mov_b64 exec, -1
s_mov_b32 {sT3}, 1
L_notbest:
""")
stamp(8)
a(f"v_add_f32 {v(B2)}, 1.0, {v(A2)}\nv_sub_f32 {v(B3)}, {v(vPV)}, {v(A3)}")
for i in range(8):
    a(f"v_pk_fma_f32 {v(D2+2*i,2)}, {v(D2+2*i,2)}, {v(B2,2)}, {v(B3,2)} op_sel_hi:[1,0,0]")
for i in range(8):
    a(f"v_cvt_pk_bf16_f32 {v(Y+i)}, {v(D2+2*i)}, {v(D2+2*i+1)}")
a(f"""
s_mov_b64 exec, {sE28}
global_store_dwordx4 {v(vOA)}, {v(Y,4)}, {sOUT} sc1
global_store_dwordx4 {v(vOA)}, {v(Y+4,4)}, {sOUT} offset:448 sc1
s_cmp_eq_u32 {sT3}, 0
s_cbranch_scc1 L_fin
""")
if PACE3 == 1: a(f"s_waitcnt vmcnt({8 if NEAR else 5})")
if PACE3: arrive(C_PUB)
a(f"""
s_mov_b64 exec, {'0xffff' if NEAR else '0xff'}
s_waitcnt vmcnt(0)
global_store_dwordx4 {v(vFA5)}, {v(SL,4)}, {sWS} sc1
s_branch L_fin
""")

a("L_C:\ns_waitcnt lgkmcnt(0)")
kgen_dt()
a("s_waitcnt vmcnt(0)")
stamp(1)
rows = kgen_rows(0)
emit(rows[:cut(rows, 2)])
a(f"global_load_dwordx4 {v(vTAB,4)}, v14, {sPC}\nglobal_load_dwordx4 {v(vTAB+4,4)}, v14, {sPC} offset:1024")
emit(rows[cut(rows, 2):])
for s in range(4):
    for t in (0, 2, 1, 3): a(kread(t, s))
fill = ["s_waitcnt vmcnt(0)"] + [(f"v_lshrrev_b32 {v(GA+k)}, 16, {v(vTAB+k//2)}" if k % 2 else f"v_and_b32 {v(GA+k)}, 0xffff, {v(vTAB+k//2)}") for k in range(11)]
fill += [f"v_lshrrev_b32 {v(vKW)}, 16, {v(vTAB+7)}", f"v_add_u32 {v(vRD)}, {4*TR_W}, {v(vRD)}"]
for s in range(4):
    a(f"s_waitcnt lgkmcnt({12-4*s})")
    for j, (h, l) in enumerate(((0, 0), (1, 0), (0, 1), (1, 1))):
        a(kmfma(h, l, s, s == 0)); emit(fill[4*s+j:4*s+j+1])
a(f"ds_write_b128 {v(vKP)}, v[8:11]")
stamp(10)
a(f"L_f_again:\nds_read_b32 v54, {v(vCF)} offset:{C_F}")
for s in range(4):
    for t in (0, 2, 1): a(kread(t, s))
a("s_waitcnt lgkmcnt(9)\nv_cmp_eq_u32 vcc, 0, v54\ns_cbranch_vccnz L_f_retry")
def tail():
    a("L_f_retry:")
    spin("fsp", C_F, 1, 54, base=vCF)
    a("s_cbranch_scc0 L_f_again\ns_branch L_end")
TAILS.append(tail)
for s in range(4):
    if s: a(f"s_waitcnt lgkmcnt({9-3*s})")
    a(kmfma(0, 0, s)); a(kmfma(1, 0, s))
emit(twrite(0, 0)); emit(twrite(1, 0))
spin("sf", C_F, 2, 54, [kread(3, s) for s in range(4)], base=vCF)
for h in range(2):
    for s in range(4): a(kmfma(h, 1, s))
emit(twrite(0, 1))
arrive(C_T, vCT)
stamp(2)
GV = 24
ACC, BF, AF, BK = 24, 56, 88, 152
def Areg(aa, g): return 216 + 4*(aa-4) if (g == 3 and aa >= 4) else AF + 16*g + 4*(aa % 4)
def Breg(b, g): return BK + 16*g + 4*b if b < 4 else BF + 4*(b-4) + 16*(g % 2)
def Aload(aa, g): return f"ds_read_b128 {v(Areg(aa,g),4)}, {v(vA)} offset:{(4*aa-g+3)*KC_ROW}"
B0L = [f"ds_read_b64 {v(Breg(b,0)+2*h,2)}, {v(vB)} offset:{512*b+8*h}" for b in range(3) for h in range(2)]
gl = [f"ds_read_b64 {v(GV+2*k,2)}, {v(GA+k)}" for k in range(11)]
a(f"ds_read_b32 v54, {v(vCT)} offset:{C_T}"); emit(gl)
emit(twrite(1, 1))
a(f"s_mov_b64 exec, 1\nds_add_u32 {v(vCT)}, {v(vONE)} offset:{C_T2}\ns_mov_b64 exec, -1")
a("s_waitcnt lgkmcnt(4)\nv_cmp_gt_u32 vcc, 2, v54\ns_cbranch_vccnz L_t_retry\nL_t_ok:")
def tail():
    a("L_t_retry:")
    spin("st", C_T, 2, 54, gl, base=vCT)
    a("s_branch L_t_ok")
TAILS.append(tail)
a(f"ds_read_b32 v22, {v(vZ)} offset:{C_U}"); emit(B0L)
for k in range(11): a(f"v_add_f32 {v(GV+2*k)}, {v(GV+2*k)}, {v(GV+2*k+1)}")
gran(56, GV, list(range(11)), vKW, 0)
for aa in range(4): a(Aload(aa, 0))
stamp(3)
mf = []
for g2 in range(3):
    for b in range(8):
        for aa in range(min(4, 8-b)): mf.append((aa+b, aa, b, g2))
for nu in range(8):
    for aa in range(min(nu, 3), -1, -1): mf.append((nu, aa, nu-aa, 3))
iM = len(mf) - 8 + 1
for nu in range(4, 8):
    for aa in range(4, nu+1):
        for g2 in range(4): mf.append((nu, aa, nu-aa, g2))
first_use = {}; last_use = {}; last_acc = {}
for i, (nu, aa, b, g2) in enumerate(mf):
    for k in (('A', aa, g2), ('B', b, g2)):
        first_use.setdefault(k, i); last_use[k] = i
    last_acc[nu] = i
ops = []
for g2 in range(4):
    for b in range(8):
        rdy = last_use[('B', b, g2-2)] if b >= 4 and g2 >= 2 else -1
        for h in range(2): ops.append((first_use[('B', b, g2)], rdy, ('B', b, g2), f"ds_read_b64 {v(Breg(b,g2)+2*h,2)}, {v(vB)} offset:{512*b+128*g2+8*h}"))
    for aa in range(8):
        if g2 or aa >= 4: ops.append((first_use[('A', aa, g2)], iM if aa >= 4 else -1, ('A', aa, g2), Aload(aa, g2)))
for nu in range(8): ops.append((last_acc[nu]+8 if nu < 4 else 1000+nu, last_acc[nu]+8, ('W', nu), f"ds_write_b128 {v(vPB)}, {v(ACC+4*nu,4)} offset:{1024*nu}"))
ops.sort(key=lambda o: o[0])
while ops[0][0] <= 8:
    o = ops.pop(0); assert o[3] in B0L
a("s_waitcnt lgkmcnt(3)\nv_cmp_gt_u32 vcc, 4, v22\ns_cbranch_vccnz L_u_retry\nL_u_ok:")
issued = [(('A', aa, 0), -1) for aa in range(4)]; done = 1
def tail():
    a("L_u_retry:")
    spin("usp0", C_U, 3, 22)
    spin("usp", C_U, 4, 22, B0L)
    a("s_branch L_u_ok")
TAILS.append(tail)
stamp(4)
seen_acc = set()
for i, (nu, aa, b, g2) in enumerate(mf):
    keys = (('A', aa, g2), ('B', b, g2))
    assert not any(o[2] in keys for o in ops), (i, keys)
    need_ = max([j+1 for j, (k, _) in enumerate(issued) if k in keys] + [1])
    if need_ > done:
        tgt = need_
        while tgt < len(issued) and issued[tgt][1] <= i - 7: tgt += 1
        a(f"s_waitcnt lgkmcnt({min(15, len(issued)-tgt)})"); done = len(issued) - min(15, len(issued)-tgt)
    a(f"v_mfma_f32_16x16x32_bf16 {v(ACC+4*nu,4)}, {v(Areg(aa,g2),4)}, {v(Breg(b,g2),4)}, {v(ACC+4*nu,4) if nu in seen_acc else '0'}")
    seen_acc.add(nu)
    if i == iM:
        assert not any(o[2][0] == 'W' and o[2][1] < 4 for o in ops)
        need_ = max(j+1 for j, (k, _) in enumerate(issued) if k[0] == 'W')
        if need_ > done: a(f"s_waitcnt lgkmcnt({len(issued)-need_})"); done = need_
        a("s_barrier")
    pick = next((j for j, o in enumerate(ops) if o[1] <= i), None)
    if pick is not None:
        o = ops.pop(pick); a(o[3]); issued.append((o[2], i))
for o in ops: a(o[3])
a("s_waitcnt lgkmcnt(0)")
stamp(9)
a("s_barrier\ns_branch L_fin")
SG, SD, XA, FA = 24, 136, 192, 240
sF = sP
def GUreg(s, m_): return SG + 16*(s >> 1) + 8*m_ + 4*(s & 1)
a(f"""
L_C_spare:
s_mov_b32 s46, -1
s_mov_b32 s47, 0xffffff
v_lshrrev_b32 v20, 3, v0
v_and_b32 v21, 7, v0
v_mul_u32_u24 v22, 3584, v20
v_lshl_add_u32 v22, v21, 4, v22
s_lshl_b32 {sT0}, {sF}, 7
v_add_u32 v22, {sT0}, v22
s_mul_i32 {sT0}, {sF}, {64*896}
v_lshl_add_u32 v23, v0, 4, {sT0}
v_mul_u32_u24 v2, {WG_ROW}, v20
v_lshl_add_u32 v2, v21, 4, v2
v_add_u32 v3, {7*32*WG_ROW}, v2
v_and_b32 v20, 32, {v(vLANE)}
v_lshrrev_b32 v20, 1, v20
v_bfe_u32 v21, {v(vLANE)}, 4, 1
v_lshl_add_u32 v20, v21, 2, v20
v_bfe_u32 v21, {v(vLANE)}, 2, 1
v_and_b32 v4, 8, {v(vLANE)}
v_add3_u32 v20, v20, v21, v4
v_and_b32 v5, 3, {v(vLANE)}
v_lshlrev_b32 v5, 3, v5
s_lshl_b32 {sT0}, {sW}, 5
v_mul_u32_u24 v6, {WG_ROW}, v20
v_add3_u32 v6, v6, v5, {sT0}
v_add_u32 v7, {7*32*WG_ROW}, v6
s_mul_i32 {sT0}, {sW}, 224
v_mul_u32_u24 v8, {WD_ROW}, v20
v_add3_u32 v8, v8, v5, {sT0}
s_waitcnt vmcnt(0)
""")
spin("sf0", C_ST, 4, 9, [f"ds_read_b32 {v(vTAG)}, {v(vZ)} offset:{M_TAG}"])
a(f"""
v_readfirstlane_b32 {sTAG}, {v(vTAG)}
s_getreg_b32 {sNEAR}, hwreg(HW_REG_XCC_ID, 2, 1)
s_cmp_eq_u32 {sXG}, 7
s_cbranch_scc1 L_idle
""")
wl = []
for i in range(14):
    wl.append(f"global_load_dwordx4 {v(SD+4*i,4)}, v23, {sWD}" + ("\ns_add_u32 s30, s30, 4096\ns_addc_u32 s31, s31, 0" if i < 13 else ""))
for i in range(14):
    wl.append(f"global_load_dwordx4 {v(GUreg(i,0),4)}, v22, {sWG}" + (f"\ns_add_u32 s26, s26, {32*3584}\ns_addc_u32 s27, s27, 0" if i < 13 else ""))
    wl.append(f"global_load_dwordx4 {v(GUreg(i,1),4)}, v22, {sWU}" + (f"\ns_add_u32 s28, s28, {32*3584}\ns_addc_u32 s29, s29, 0" if i < 13 else ""))
emit(wl[:WIN]); wi = [WIN]
def wnext(k): a(f"s_waitcnt vmcnt({wi[0]-k-1})")
def wmore(n=1):
    for _ in range(n):
        if wi[0] < 42: a(wl[wi[0]]); wi[0] += 1
stamp(1)
a(f"s_mov_b32 {sT0}, {(2**32+55)//56}")
for i in range(14):
    a(f"v_add_u32 v9, {256*i}, v0")
    a(f"v_mul_hi_u32 v10, v9, {sT0}")
    a(f"v_add_lshl_u32 v9, v9, v10, 4")
    wnext(i)
    a(f"ds_write_b128 v9, {v(SD+4*i,4)} offset:{L_ST}")
    wmore()
arrive(C_SG)
def gu_write(i):
    base, off = (3, L_ST+i*32*WG_ROW) if i < 7 else (2, L_ST+(i-7)*32*WG_ROW)
    for m_ in range(2):
        wnext(14+2*i+m_)
        a(f"ds_write_b128 {v(base)}, {v(GUreg(i,m_),4)} offset:{off+128*m_}")
        wmore(W2)
def gu_read(s):
    base, off = (7, L_ST+s*32*WG_ROW) if s < 7 else (6, L_ST+(s-7)*32*WG_ROW)
    for m_ in range(2):
        for h in range(2):
            a(f"ds_read_b64_tr_b16 {v(GUreg(s,m_)+2*h,2)}, {v(base)} offset:{off+2*h*WG_ROW+128*m_}")
for i in range(2): gu_write(i)
spin("sf1", C_SG, 4, 9)
for T in range(7):
    for s in range(2):
        for h in range(2):
            a(f"ds_read_b64_tr_b16 {v(SD+8*T+4*s+2*h,2)}, v8 offset:{L_ST+(32*s+2*h)*WD_ROW+32*T}")
for i in range(2, 7): gu_write(i)
arrive(C_SG)
spin("sf2", C_SG, 8, 9)
stamp(2)
for s in range(7): gu_read(s)
for i in range(7, 14): gu_write(i)
arrive(C_SG)
vIDX = 17
a(f"""
s_lshr_b32 {sT0}, {sF}, 1
s_lshl_b32 {sT0}, {sT0}, 14
s_and_b32 {sT1}, {sF}, 1
s_lshl_b32 {sT1}, {sT1}, 12
s_add_u32 {sT0}, {sT0}, {sT1}
s_mul_i32 {sT1}, {sW}, 896
s_add_u32 {sT0}, {sT0}, {sT1}
s_add_u32 {sT0}, {sT0}, {WS_P4}
v_lshl_add_u32 v23, {v(vLANE)}, 3, {sT0}
v_add_u32 v21, 0x2000, v23
v_add_u32 v9, {sT0}, {v(vL16)}
v_add_u32 v10, 0x2000, v9
v_not_b32 {v(XA+1)}, {v(vTAG)}
v_not_b32 {v(XA+3)}, {v(vTAG)}
v_mov_b32 v2, {WS_POL}
s_mov_b64 exec, {sE56}
global_store_dwordx4 v9, {v(XA,4)}, {sWS} sc1
""")
if NEAR: a(f"global_store_dwordx4 v10, {v(XA,4)}, {sWS} sc1\ns_mov_b64 exec, 1\nglobal_load_dwordx2 {v(XA+4,2)}, v2, {sWS} sc1")
a(f"""
s_mov_b64 exec, -1
v_and_b32 v2, 1, {v(vLANE)}
v_mul_u32_u24 {v(vIDX)}, 0xaaaa, v2
v_add_u32 {v(vIDX)}, 0x4444, {v(vIDX)}
v_and_b32 v3, 0x30, {v(vLANE)}
v_lshlrev_b32 v3, 1, v3
v_lshl_add_u32 v20, v2, 4, v3
v_add_u32 v2, {M_GU}, v20
v_mov_b32 v3, {M_ZERO}
v_bfe_u32 v4, {v(vLANE)}, 2, 2
""")
for T in range(4):
    a(f"v_cmp_eq_u32 vcc, {T}, v4")
    a(f"v_cndmask_b32 {v(12+T)}, v3, v2, vcc")
a(f"""
s_lshl_b32 {sT0}, {sW}, 5
s_add_u32 {sT0}, {sT0}, {M_GU}
v_lshl_add_u32 v22, {v(vLANE)}, 1, {sT0}
""")
for i in range(16): a(f"v_mov_b32 {v(FA+i)}, 0")
spin("sf3", C_SG, 12, 9)
stamp(3)
for s in range(7, 14): gu_read(s)
a("s_waitcnt vmcnt(0) lgkmcnt(0)")
stamp(6)
if NEAR:
    a(f"""
v_readfirstlane_b32 {sT0}, {v(XA+4)}
v_readfirstlane_b32 {sT1}, {v(XA+5)}
s_xor_b32 {sNEAR}, {sNEAR}, {sT0}
s_and_b32 {sNEAR}, {sNEAR}, 1
s_lshl_b32 {sNEAR}, {sNEAR}, 13
s_cmp_eq_u32 {sT1}, {sTAG}
s_cselect_b32 {sNEAR}, {sNEAR}, 0
""")
    if NEAR == 2: a(f"s_xor_b32 {sNEAR}, {sNEAR}, 0x2000")
else: a(f"s_mov_b32 {sNEAR}, 0")
PA = 224
a(f"""
s_and_b32 {sT0}, {sRANK}, 3
s_lshl_b32 {sT0}, {sT0}, 14
s_add_u32 {sT0}, {sT0}, {sNEAR}
s_add_u32 {sT0}, {sT0}, {WS_S3}
v_lshl_add_u32 v2, {v(vLANE)}, 7, {sT0}
v_xor_b32 v3, 0x4000, v2
v_xor_b32 v4, 0x8000, v2
v_xor_b32 v5, 0xc000, v2
s_add_u32 {sT0}, {sNEAR}, {WS_R3}
v_add_u32 v7, {sT0}, {v(vL16)}
v_lshrrev_b32 v8, 4, {v(vLANE)}
v_bfe_u32 v9, {v(vLANE)}, 3, 1
v_and_b32 v10, 7, {v(vLANE)}
s_lshl_b32 {sT0}, {sF}, 7
s_add_u32 {sT0}, {sT0}, {sNEAR}
s_add_u32 {sT0}, {sT0}, {WS_P4}
v_lshl_add_u32 {v(PA)}, v8, 14, {sT0}
v_lshl_add_u32 {v(PA)}, v9, 12, {v(PA)}
v_lshl_add_u32 {v(PA)}, v10, 4, {v(PA)}
v_add_u32 {v(PA+1)}, 0x10000, {v(PA)}
v_add_u32 {v(PA+2)}, 0x20000, {v(PA)}
v_add_u32 {v(PA+3)}, 0x30000, {v(PA)}
s_lshl_b32 {sT0}, {sF}, 5
v_lshl_add_u32 {v(PA+4)}, v10, 2, {sT0}
s_cmp_lg_u32 {sW}, 0
s_cbranch_scc1 L_ffn_w
""")
spin("spub", C_PUB, 1, 9)
stamp(8)
poll("p3", [f"global_load_dwordx2 {v(XA+2*i,2)}, {v(2+i)}, {sWS} sc1" for i in range(4)], tagcheck([XA+1, XA+3, XA+5, XA+7], 9))
stamp(4)
if STAMPS: a(f"s_mov_b32 s53, {sCNT}")
a(f"v_max3_u32 v9, {v(XA)}, {v(XA+2)}, {v(XA+4)}\nv_max_u32 v9, v9, {v(XA+6)}")
for st in ("row_shr:1", "row_shr:2", "row_shr:4", "row_shr:8"): a(f"v_max_u32_dpp v9, v9, v9 {st} {DM}")
a(f"""
v_readlane_b32 {sT0}, v9, 15
v_readlane_b32 {sT1}, v9, 31
v_readlane_b32 {sT2}, v9, 47
v_readlane_b32 {sT3}, v9, 63
s_max_u32 {sT0}, {sT0}, {sT1}
s_max_u32 {sT2}, {sT2}, {sT3}
s_max_u32 {sIDX}, {sT0}, {sT2}
s_andn2_b32 {sIDX}, 0x7ff, {sIDX}
s_and_b32 {sT0}, {sIDX}, 0x7e0
s_and_b32 {sT1}, {sIDX}, 0x7f8
s_add_u32 {sT0}, {sT0}, {sT1}
v_lshl_add_u32 v6, {sT0}, 8, v7
s_mov_b64 exec, 0xfffffff
""")
poll("p3r", [f"global_load_dwordx4 {v(XA+4*i,4)}, v6, {sWS} offset:{512*i} sc1" for i in range(3)], tagcheck([XA+3, XA+7, XA+11], 9), restore="0xfffffff")
if STAMPS: a(f"s_lshl_b32 s53, s53, 8\ns_add_u32 s53, s53, {sCNT}")
a(f"""
v_mov_b32 {v(XA+3)}, {v(XA+4)}
v_mov_b32 {v(XA+7)}, {v(XA+6)}
v_mov_b32 {v(XA+6)}, {v(XA+5)}
ds_write_b128 {v(vL16)}, {v(XA,4)} offset:{M_XS}
ds_write_b128 {v(vL16)}, {v(XA+6,4)} offset:{M_XS+448}
s_mov_b64 exec, 1
ds_add_u32 {v(vZ)}, {v(vONE)} offset:{C_X}
s_mov_b64 exec, -1
v_readlane_b32 s46, {v(XA+10)}, 16
v_readlane_b32 s47, {v(XA+10)}, 17
v_readlane_b32 s48, {v(XA+10)}, 18
L_ffn_go:
""")
def tail():
    a("L_ffn_w:")
    spin("sx", C_X, 1, 9)
    a("s_branch L_ffn_go")
TAILS.append(tail)
stamp(9)
for S in range(7): a(f"ds_read_b128 {v(XA+4*S,4)}, v20 offset:{M_XS+128*S}")
for S in range(7):
    a(f"s_waitcnt lgkmcnt({6-S})")
    for m_ in range(2):
        a(f"v_smfmac_f32_16x16x64_bf16 {v(FA+4*m_,4)}, {v(XA+4*S,4)}, {v(SG+16*S+8*m_,8)}, {v(vIDX)}")
a(f"""
s_mov_b64 exec, 0xffff
v_add_f32 v4, {v(FA)}, {v(FA+1)}
v_add_f32 v3, {v(FA+4)}, {v(FA+5)}
v_mul_f32 v2, {hex(f2u(-1.4426950408889634))}, v4
v_exp_f32 v2, v2
v_mul_f32 v3, v3, v4
v_add_f32 v2, 1.0, v2
v_rcp_f32 v2, v2
v_mul_f32 v2, v2, v3
v_cvt_pk_bf16_f32 v2, v2, v2
ds_write_b16 v22, v2
s_mov_b64 exec, -1
s_waitcnt lgkmcnt(0)
s_barrier
""")
for T in range(4): a(f"ds_read_b128 {v(XA+4*T,4)}, {v(12+T)}")
a(f"v_mov_b32 v3, {sTAG}\nv_mov_b32 v5, {sTAG}")
for T in range(4):
    a(f"s_waitcnt lgkmcnt({3-T})")
    for hi in (1, 0):
        if 4*hi+T < 7:
            a(f"v_smfmac_f32_16x16x64_bf16 {v(FA+8+4*hi,4)}, {v(XA+4*T,4)}, {v(SD+8*(4*hi+T),8)}, {v(vIDX)}")
a(f"""
s_cmp_lg_u32 {sW}, 0
v_add_f32 v4, {v(FA+12)}, {v(FA+13)}
v_add_f32 v2, {v(FA+8)}, {v(FA+9)}
global_store_dwordx2 v23, v[2:3], {sWS} sc1
""")
if NEAR: a(f"global_store_dwordx2 v21, v[2:3], {sWS} sc1")
a(f"s_mov_b32 exec_hi, 0xffff\nglobal_store_dwordx2 v23, v[4:5], {sWS} offset:512 sc1")
if NEAR: a(f"global_store_dwordx2 v21, v[4:5], {sWS} offset:512 sc1")
a("s_mov_b64 exec, -1\ns_cbranch_scc1 L_fin")
stamp(10)
a(f"""
ds_read_b32 v46, {v(PA+4)} offset:{M_XS}
s_and_b32 {sT0}, {sIDX}, 0x600
s_and_b32 {sT1}, {sIDX}, 0x7f8
s_add_u32 {sT0}, {sT0}, {sT1}
s_lshl_b32 {sT0}, {sT0}, 4
s_add_u32 {sT0}, {sT0}, {sNEAR}
s_add_u32 {sT0}, {sT0}, {WS_F5}
s_mov_b32 exec_lo, 0
v_mov_b32 {v(PA+3)}, {sT0}
s_mov_b32 exec_lo, -1
s_mul_i32 {sT1}, {sIDX}, 896
v_add_u32 v27, {sT1}, {v(PA+4)}
v_mov_b32 v44, {hex(f2u(-1.4426950408889634))}
v_mul_f32 v44, s46, v44
v_exp_f32 v44, v44
v_mov_b32 v50, s47
v_add_f32 v44, 1.0, v44
v_rcp_f32 v44, v44
s_waitcnt lgkmcnt(0)
v_lshlrev_b32 v48, 16, v46
v_and_b32 v49, 0xffff0000, v46
v_fma_f32 v48, v48, s48, v50
v_fma_f32 v49, v49, s48, v50
""")
if PACE4: a("s_waitcnt vmcnt(0)")
stamp(5)
poll("p4", [f"global_load_dwordx4 {v(28+4*i,4)}, {v(PA+i)}, {sWS} sc1" for i in range(4)], tagcheck([29+2*i for i in range(8)], 9))
if STAMPS: a(f"s_lshl_b32 s53, s53, 8\ns_add_u32 s53, s53, {sCNT}")
a(f"""
v_add_f32 v28, v28, v32
v_add_f32 v30, v30, v34
s_mov_b32 exec_hi, 0
v_add_f32 v36, v36, v40
v_add_f32 v38, v38, v42
s_mov_b32 exec_hi, -1
v_add_f32 v28, v28, v36
v_add_f32 v30, v30, v38
v_permlane32_swap_b32 v28, v30
v_add_f32 v28, v28, v30
v_add_f32_dpp v28, v28, v28 row_ror:8 {DM}
v_mov_b32 v29, v28
v_permlane16_swap_b32 v28, v29
v_add_f32 v28, v28, v29
v_mov_b32 v29, v28
v_permlane32_swap_b32 v28, v29
v_pk_fma_f32 v[28:29], v[28:29], v[44:45], v[48:49] op_sel_hi:[1,0,1]
v_cvt_pk_bf16_f32 v28, v28, v29
s_mov_b64 exec, 0xff
global_store_dword v27, v28, {sOUT} sc1
""")
stamp(11)
a("L_fin:")
if STAMPS:
    a("s_waitcnt vmcnt(0)")
    stamp(12)
    a(f"""
s_lshl_b32 {sT0}, s2, 3
s_add_u32 {sT0}, {sT0}, {sW}
s_lshl_b32 {sT0}, {sT0}, 7
s_add_u32 {sT0}, {sT0}, {WS_DBG}
s_mov_b64 exec, 1
v_mov_b32 v20, {sT0}
""")
    for i in range(26):
        a(f"v_mov_b32 v21, s{62+i}\nglobal_store_dword v20, v21, {sWS} offset:{4*i}")
    a(f"v_mov_b32 v21, s53\nglobal_store_dword v20, v21, {sWS} offset:104")
a("L_end:\ns_endpgm")
a("L_idle:")
if NEAR:
    a(f"""
s_lshl_b32 {sT0}, {sRANK}, 2
s_add_u32 {sT0}, {sT0}, {sW}
s_cmp_lg_u32 {sT0}, {28*4}
s_cbranch_scc1 L_fin
v_add_u32 v2, {WS_PRB}, {v(vL16)}
v_add_u32 v3, 0x2000, v2
s_mov_b64 exec, 0xff
s_mov_b32 s26, -1
s_mov_b32 s27, -1
""")
    for r in range(4):
        for c in range(2):
            a(f"""
s_memtime s[28:29]
s_waitcnt lgkmcnt(0)
global_store_dwordx4 {v(2+c)}, v[8:11], {sWS} sc1
s_waitcnt vmcnt(0)
s_memtime s[30:31]
s_waitcnt lgkmcnt(0)
s_sub_u32 s30, s30, s28
s_min_u32 s{26+c}, s{26+c}, s30
""")
    a(f"""
s_cmp_lt_u32 s27, s26
s_cselect_b32 {sT0}, 1, 0
s_xor_b32 {sT0}, {sT0}, {sNEAR}
v_mov_b32 v4, {sT0}
v_mov_b32 v5, {sTAG}
v_mov_b32 v6, {sT0}
v_mov_b32 v7, {sTAG}
v_add_u32 v2, {WS_POL}, {v(vL16)}
global_store_dwordx4 v2, v[4:7], {sWS} sc1
""")
a("s_branch L_fin")
for t in TAILS: t()

n = a.fix_hazards()
check_waitcnt(a)
na = align_pass(a) if "--noalign" not in sys.argv else 0

def rbf(l):
    u = f2u(float(l)); u = (u + 0x7fff + ((u >> 16) & 1)) & 0xffff0000
    return int(struct.unpack("<f", struct.pack("<I", u))[0])
def taddr(l, ch):
    if l < 0: return M_ZERO
    lr = rbf(l); b, col, off = lr >> 8, (lr >> 3) & 31, lr & 7
    row = [off, 8+off//2, 12+off//4, 14+off//4, 16, 17, 18, 19, 20][b]
    return L_T + ch*T_CH + row*256 + col*8
tab = []
for cw in range(4):
    ch, hw = cw >> 1, cw & 1
    rows_ = []
    for lane in range(64):
        n4 = lane >> 2; kq = lane & 3
        N = (n4 & ~3) | ((n4 & 1) << 1) | ((n4 >> 1) & 1)
        MA = 8*N + 7 - 4*hw - kq; MB = MA + 128
        e = [taddr(8*MA-3+k, ch) for k in range(11)]
        eb = [taddr(8*MB-3+k, ch) for k in range(11)]
        assert len(set(eb[1:7])) == 1 and len(set(eb[8:11])) == 1
        e += [eb[0], eb[1], eb[7], eb[8]]
        e.append(L_TR + cw*TR_W + (N+3)*KC_ROW + kq*16)
        assert max(e) < 65536
        rows_.append(e)
    tab += [e[:8] for e in rows_] + [e[8:] for e in rows_]
table = ".p2align 7\n.type L_table,@object\nL_table:\n" + "".join(".short " + ", ".join(str(x) for x in e) + "\n" for e in tab) + ".size L_table, 8192\n"

ref = open("cdna_kernels/%s.s.ref" % NAME).read()
head = "".join(l + "\n" for l in ref.splitlines() if l.startswith(";") and "@launch" not in l)
out = head + f"; @launch grid=(256,1,1) block=(512,1,1) lds={LDS_SIZE}\n" + f""".amdgcn_target "amdgcn-amd-amdhsa--gfx950"
.text
.globl {NAME}_kernel
.p2align 8
.type {NAME}_kernel,@function
{NAME}_kernel:
""" + a.text() + table + f""".section .rodata,"a"
.p2align 6
.amdhsa_kernel {NAME}_kernel
  .amdhsa_next_free_vgpr 256
  .amdhsa_next_free_sgpr 96
  .amdhsa_accum_offset 256
  .amdhsa_group_segment_fixed_size 0
  .amdhsa_kernarg_size 136
  .amdhsa_user_sgpr_count 2
  .amdhsa_user_sgpr_kernarg_segment_ptr 1
  .amdhsa_system_sgpr_workgroup_id_x 1
  .amdhsa_float_denorm_mode_32 3
.end_amdhsa_kernel
"""
dst = [x for x in sys.argv[1:] if not x.startswith("--")]
dst = dst[0] if dst else "cdna_kernels/%s.s" % NAME
open(dst, "w").write(out)
print("wrote", dst, "instrs", sum(1 for x in a.ins if x.op), "nops added", n, "align fixes", na, "lds", LDS_SIZE)
```
